```python
import torch

def _softmax(x, axis=-1):
    return torch.softmax(x, dim=axis)
def _gelu(x):
    return torch.nn.functional.gelu(x, approximate="tanh")
def _silu(x):
    return torch.nn.functional.silu(x)
def _sigmoid(x):
    return torch.sigmoid(x)
def _layernorm(x, axis=-1, eps=1e-5):
    m = x.mean(dim=axis, keepdim=True)
    v = x.var(dim=axis, keepdim=True, unbiased=False)
    return (x - m) / torch.sqrt(v + eps)
def _scatter_add(tgt, idx, src, axis=0):
    return tgt.clone().index_add_(axis, idx, src)
def _segment_sum(src, seg, n):
    out = torch.zeros((n,) + src.shape[1:], dtype=src.dtype)
    return out.index_add_(0, seg, src)
def _pad(x, pw):
    flat = tuple(v for pair in reversed(pw) for v in pair)
    return torch.nn.functional.pad(x, flat)

kernel_name = 'parallel_sum__sliding_block__mixer_channel_mlp__prompt'

def setup_inputs():

    _w = (lambda a: (lambda t: t.to(torch.bfloat16) if t.is_floating_point() else t)(torch.as_tensor(a)))
    def _A_setup():
        B, S, D = 1, 2048, 640
        return {
            "x": _w((lambda *s: torch.randn(*s, dtype=torch.bfloat16) * 0.05)(B, S, D)),
            "wqkv": _w((lambda *s: torch.randn(*s, dtype=torch.bfloat16) * 0.05)(D, 3 * D)),
            "wo": _w((lambda *s: torch.randn(*s, dtype=torch.bfloat16) * 0.05)(D, D)),
        }
    _A_in = _A_setup()

    def _B_setup():
        B, S, D, F = 1, 2048, 640, 1536
        return {
            "x": _w((lambda *s: torch.randn(*s, dtype=torch.bfloat16) * 0.05)(B, S, D)),
            "w1": _w((lambda *s: torch.randn(*s, dtype=torch.bfloat16) * 0.8)(D, F) * (D ** -0.5)),
            "b1": _w((lambda *s: torch.randn(*s, dtype=torch.bfloat16) * 0.8)(F)),
            "w2": _w((lambda *s: torch.randn(*s, dtype=torch.bfloat16) * 0.8)(F, D) * (F ** -0.5)),
            "b2": _w((lambda *s: torch.randn(*s, dtype=torch.bfloat16) * 0.4)(D)),
        }
    _B_in = _B_setup()

    return {
        "A_x": _A_in["x"],
        "A_wqkv": _A_in["wqkv"],
        "A_wo": _A_in["wo"],
        "B_x": _B_in["x"],
        "B_w1": _B_in["w1"],
        "B_b1": _B_in["b1"],
        "B_w2": _B_in["w2"],
        "B_b2": _B_in["b2"],
    }

def reference(A_x, A_wqkv, A_wo, B_x, B_w1, B_b1, B_w2, B_b2):
    def _A_ref(x, wqkv, wo):
        B, S, D = x.shape
        H = 32; Dh = D // H; W = 256
        qkv = (lambda x, *d: x.permute(*d))((x @ wqkv).reshape(B, S, 3, H, Dh), 2, 0, 3, 1, 4)
        q, k, v = qkv[0], qkv[1], qkv[2]
        scores = torch.einsum("bhqd,bhkd->bhqk", q, k) * (Dh ** -0.5)
        idx = torch.arange(S)
        mask = (idx[:, None] - idx[None, :] >= 0) & (idx[:, None] - idx[None, :] < W)
        scores = torch.where(mask[None, None], scores, -1e9)
        p = _softmax(scores, axis=-1)
        o = torch.einsum("bhqk,bhkd->bhqd", p, v)
        return (lambda x, *d: x.permute(*d))(o, 0, 2, 1, 3).reshape(B, S, D) @ wo

    def _B_ref(x, w1, b1, w2, b2):
        y = _layernorm(x, axis=-1)
        h = _gelu(torch.einsum("bsd,df->bsf", y, w1) + b1)
        return torch.einsum("bsf,fd->bsd", h, w2) + b2

    x = A_x
    xn = _layernorm(x, axis=-1)
    return x + _A_ref(xn, A_wqkv, A_wo) + _B_ref(xn, B_w1, B_b1, B_w2, B_b2)
```

```python
import math, re
S=2048; D=640; F=1536; H=32; DH=20
OFF_STATS = 0x0
OFF_CS    = 0x8000
OFF_QK    = 0x10000
OFF_V     = 0x510000
OFF_H     = 0x790000
OFF_O     = 0xD90000
OFF_O4    = 0xF90000
OFF_W3    = 0x1010000
OFF_FLAGS = 0x1300000
WS_USED   = 0x1400000
XB = S*D*2
WQKVB = D*3*D*2
WOB = D*D*2
W1B = D*F*2
W2B = F*D*2
B1B = F*2
B2B = D*2
OUTB = S*D*2
LOG2E = 1.4426950408889634
QSCALE = LOG2E / math.sqrt(DH)
GC1 = -2.0*math.sqrt(2.0/math.pi)*LOG2E
GC2 = GC1*0.044715
EPS = 1e-5

import struct
def f2u(x):
    return struct.unpack("<I", struct.pack("<f", x))[0]
def fhex(x):
    return "0x%08x" % f2u(x)

class Asm:
    def __init__(self):
        self.lines = []
        self.n = 0
    def __call__(self, s=""):
        for l in s.strip("\n").split("\n"):
            l = l.strip()
            if l == "": continue
            if l.startswith("buffer_"):
                m = re.search(r"offset:(\d+)", l)
                if m and int(m.group(1)) > 4095: raise ValueError("MUBUF offset too large: " + l)
            if l.startswith("ds_"):
                m = re.search(r"offset:(-?\d+)", l)
                if m and not (0 <= int(m.group(1)) <= 65535): raise ValueError("DS offset out of range: " + l)
            if l.endswith(":") and not l.startswith(";"):
                self.lines.append(l)
            else:
                self.lines.append("    " + l)
    def label(self, p="L"):
        self.n += 1
        return f"{p}_{self.n}"
    def text(self):
        return "\n".join(self.lines) + "\n"

def vr(b, n=1):
    return f"v{b}" if n == 1 else f"v[{b}:{b+n-1}]"
def sr(b, n=1):
    return f"s{b}" if n == 1 else f"s[{b}:{b+n-1}]"

def srd(a, dst, lo, hi, size):
    a(f"s_mov_b32 s{dst}, s{lo}")
    a(f"s_and_b32 s{dst+1}, s{hi}, 0xffff")
    a(f"s_mov_b32 s{dst+2}, {size}")
    a(f"s_mov_b32 s{dst+3}, 0x20000")

def header(name):
    return f".globl {name}\n.p2align 8\n.type {name},@function\n{name}:\n"
def desc(name, vgpr=256, sgpr=102):
    acc = min(256, (vgpr + 3)//4*4)
    return f""".p2align 6
.amdhsa_kernel {name}
  .amdhsa_next_free_vgpr {vgpr}
  .amdhsa_next_free_sgpr {sgpr}
  .amdhsa_accum_offset {acc}
  .amdhsa_group_segment_fixed_size 0
  .amdhsa_kernarg_size 88
  .amdhsa_user_sgpr_count 2
  .amdhsa_user_sgpr_kernarg_segment_ptr 1
  .amdhsa_system_sgpr_workgroup_id_x 1
  .amdhsa_float_denorm_mode_32 3
  .amdhsa_float_denorm_mode_16_64 3
.end_amdhsa_kernel
"""
```

```python
from common import *
from side import *

LA = [0, 32768, 65536]
LW = [98304, 114688, 131072]
L_CS = 147456
L_B1 = L_CS + 512
L_M  = L_B1 + 256
L_R  = L_M + 1024
P1_LDS = L_R + 1024

ACC = 64
XF = 128
WF = 144
XADDR = 160
WADDR = 168
VA = 169
VB0 = 170; VB1 = 171
S_RB=12; S_PAIR=13; S_T0=14; S_PA=15; S_PB=16; S_TYPEA=17; S_ISH=18
SRD_W=20
S_SA=24
S_SB=28
S_WSTEP=29
S_MA=30
S_MB=31

def p1_decode(a, Lside):
    a(f"""
    s_and_b32 s40, s{S_WG}, 7              ; xcd j
    s_lshr_b32 s41, s{S_WG}, 3             ; idx
    s_and_b32 s42, s40, 1                  ; RG
    s_lshr_b32 s43, s40, 1                 ; CG
    s_cmp_lt_u32 s43, 3
    s_cselect_b32 s44, 28, 24              ; ngemm
    s_cmp_lt_u32 s41, s44
    s_cbranch_scc1 Lp1_gemm
    s_sub_u32 s45, s41, s44
    s_cmp_lt_u32 s40, 6
    s_cbranch_scc0 Lp1_side2
    s_lshl_b32 s12, s40, 2
    s_add_u32 s12, s12, s45
    s_branch {Lside}
Lp1_side2:
    s_sub_u32 s12, s40, 6
    s_lshl_b32 s12, s12, 3
    s_add_u32 s12, s12, 24
    s_add_u32 s12, s12, s45
    s_branch {Lside}
Lp1_gemm:
    s_and_b32 s45, s41, 3
    s_lshl_b32 s{S_RB}, s42, 2
    s_add_u32 s{S_RB}, s{S_RB}, s45        ; rb
    s_lshr_b32 s45, s41, 2
    s_mul_i32 s{S_PAIR}, s43, 7
    s_add_u32 s{S_PAIR}, s{S_PAIR}, s45    ; pair
    s_lshl_b32 s{S_T0}, s{S_RB}, 8
    ; pieces
    s_cmp_lt_u32 s{S_PAIR}, 10
    s_cbranch_scc0 Lp1_d1
    s_add_u32 s{S_PA}, s{S_PAIR}, 20       ; V piece (20..29)
    s_mov_b32 s{S_PB}, s{S_PAIR}
    s_mov_b32 s{S_TYPEA}, 2
    s_mov_b32 s{S_ISH}, 1
    s_branch Lp1_d3
Lp1_d1:
    s_cmp_lt_u32 s{S_PAIR}, 24
    s_cbranch_scc0 Lp1_d2
    s_sub_u32 s{S_PA}, s{S_PAIR}, 10
    s_mov_b32 s{S_PB}, s{S_PAIR}
    s_cmp_ge_u32 s{S_PA}, 10
    s_cselect_b32 s{S_TYPEA}, 1, 0
    s_mov_b32 s{S_ISH}, 1
    s_branch Lp1_d3
Lp1_d2:
    s_sub_u32 s{S_PA}, s{S_PAIR}, 24
    s_lshl_b32 s{S_PA}, s{S_PA}, 1
    s_add_u32 s{S_PA}, s{S_PA}, 14         ; 14,16,18
    s_add_u32 s{S_PB}, s{S_PA}, 1
    s_mov_b32 s{S_TYPEA}, 1
    s_mov_b32 s{S_ISH}, 0
Lp1_d3:
    """)

def p1_setup(a):
    a(f"""
    s_lshr_b32 s40, s{S_W}, 2              ; p
    s_and_b32 s41, s{S_W}, 3
    s_and_b32 s42, s40, s{S_ISH}           ; 1 -> w1
    s_cmp_eq_u32 s40, 0
    s_cselect_b32 s43, s{S_PA}, s{S_PB}
    s_lshl_b32 s43, s43, 7                 ; *128 bytes
    s_cmp_eq_u32 s42, 1
    s_cselect_b32 s{SRD_W}, s{P_W1}, s{P_WQKV}
    s_cselect_b32 s{SRD_W+1}, s{P_W1+1}, s{P_WQKV+1}
    s_mov_b32 s{SRD_W+2}, {WQKVB}
    s_cselect_b32 s{SRD_W+2}, {W1B}, s{SRD_W+2}
    s_movk_i32 s44, 3840
    s_cselect_b32 s44, 3072, s44           ; stride
    s_and_b32 s{SRD_W+1}, s{SRD_W+1}, 0xffff
    s_mov_b32 s{SRD_W+3}, 0x20000
    s_lshl_b32 s{S_WSTEP}, s44, 6          ; 64 rows
    s_mov_b32 s{S_SB}, s43
    v_lshrrev_b32 v2, 3, v1
    v_and_b32 v3, 7, v1
    v_lshrrev_b32 v4, 1, v2
    v_and_b32 v4, 1, v4
    v_lshlrev_b32 v4, 2, v4
    v_xor_b32 v3, v3, v4
    s_lshl_b32 s45, s41, 4
    v_add_u32 v2, s45, v2
    v_mul_lo_u32 v2, v2, s44
    v_lshl_add_u32 v{VB0}, v3, 4, v2
    s_lshl_b32 s45, s44, 3
    v_add_u32 v{VB1}, s45, v{VB0}
    s_lshl_b32 s{S_MB}, s40, 13
    s_lshl_b32 s45, s41, 11
    s_add_u32 s{S_MB}, s{S_MB}, s45        ; p*8192 + (w&3)*2048
    v_lshrrev_b32 v2, 3, v1
    v_and_b32 v3, 7, v1
    v_lshrrev_b32 v4, 4, v1
    s_and_b32 s45, s{S_W}, 1
    s_lshl_b32 s45, s45, 2
    v_or_b32 v4, s45, v4
    v_xor_b32 v3, v3, v4
    s_lshl_b32 s45, s{S_W}, 3
    s_add_u32 s45, s45, s{S_T0}
    v_add_u32 v2, s45, v2
    v_mul_u32_u24 v2, 1280, v2
    v_lshl_add_u32 v{VA}, v3, 4, v2
    s_mov_b32 s{S_SA}, 0
    s_mov_b32 s{S_SA+1}, 81920
    s_mov_b32 s{S_SA+2}, 163840
    s_mov_b32 s{S_SA+3}, 245760
    s_lshl_b32 s{S_MA}, s{S_W}, 10
    v_and_b32 v2, 31, v1
    s_lshl_b32 s45, s41, 6
    v_add_u32 v2, s45, v2                  ; row
    v_lshrrev_b32 v3, 1, v2
    v_and_b32 v3, 7, v3
    v_lshrrev_b32 v4, 5, v1                ; hf
    v_xor_b32 v3, v3, v4
    v_lshlrev_b32 v3, 4, v3
    v_lshl_add_u32 v{XADDR}, v2, 7, v3
    v_xor_b32 v{XADDR+1}, 32, v{XADDR}
    v_xor_b32 v{XADDR+2}, 64, v{XADDR}
    v_xor_b32 v{XADDR+3}, 96, v{XADDR}
    v_add_u32 v{XADDR+4}, 65536, v{XADDR}
    v_add_u32 v{XADDR+5}, 65536, v{XADDR+1}
    v_add_u32 v{XADDR+6}, 65536, v{XADDR+2}
    v_add_u32 v{XADDR+7}, 65536, v{XADDR+3}
    v_and_b32 v2, 15, v1
    v_lshrrev_b32 v3, 4, v1
    v_lshrrev_b32 v4, 1, v3
    v_lshlrev_b32 v4, 3, v4
    v_lshrrev_b32 v5, 2, v2
    v_add_u32 v4, v4, v5                   ; row
    v_and_b32 v5, 3, v2                    ; c
    v_and_b32 v6, 1, v5
    v_lshrrev_b32 v5, 1, v5
    v_lshl_or_b32 v5, v6, 1, v5            ; swap(c) = ((c&1)<<1)|(c>>1)
    v_and_b32 v3, 1, v3
    v_lshl_add_u32 v5, v3, 2, v5
    s_lshl_b32 s45, s40, 3                 ; nh = w>>2
    v_add_u32 v5, s45, v5                  ; quad
    v_lshlrev_b32 v5, 3, v5
    v_lshrrev_b32 v6, 3, v2
    v_lshlrev_b32 v6, 6, v6
    v_xor_b32 v5, v5, v6
    v_lshl_add_u32 v5, v4, 7, v5
    v_add_u32 v{WADDR}, {LW[0]}, v5
    """)

def p1_dma(a, c):
    st = c % 3
    for q in range(4):
        a(f"s_add_u32 m0, s{S_MA}, {LA[st] + q*8192}")
        a(f"s_nop 0")
        a(f"buffer_load_dwordx4 v{VA}, s[{SRD_X}:{SRD_X+3}], s{S_SA+q} offen lds")
    a(f"s_add_u32 m0, s{S_MB}, {LW[st]}")
    a(f"s_nop 0")
    a(f"buffer_load_dwordx4 v{VB0}, s[{SRD_W}:{SRD_W+3}], s{S_SB} offen lds")
    a(f"s_add_u32 m0, s{S_MB}, {LW[st] + 1024}")
    a(f"s_nop 0")
    a(f"buffer_load_dwordx4 v{VB1}, s[{SRD_W}:{SRD_W+3}], s{S_SB} offen lds")
    for q in range(4):
        a(f"s_add_u32 s{S_SA+q}, s{S_SA+q}, 128")
    a(f"s_add_u32 s{S_SB}, s{S_SB}, s{S_WSTEP}")

def p1_reads(a, c, s, buf):
    st = c % 3
    xa = XADDR + s + (4 if st == 2 else 0)
    xo = LA[st] - (65536 if st == 2 else 0)
    for i in range(2):
        a(f"ds_read_b128 v[{XF+8*buf+4*i}:{XF+8*buf+4*i+3}], v{xa} offset:{xo + i*4096}")
    for p in range(2):
        wo = (LW[st] - LW[0]) + p*8192 + s*2048
        a(f"ds_read_b64_tr_b16 v[{WF+8*buf+4*p}:{WF+8*buf+4*p+1}], v{WADDR} offset:{wo}")
        a(f"ds_read_b64_tr_b16 v[{WF+8*buf+4*p+2}:{WF+8*buf+4*p+3}], v{WADDR} offset:{wo + 512}")

def p1_mfma(a, buf, vform, first):
    for i in range(2):
        for p in range(2):
            acc = ACC + 32*i + 16*p
            x = f"v[{XF+8*buf+4*i}:{XF+8*buf+4*i+3}]"
            w = f"v[{WF+8*buf+4*p}:{WF+8*buf+4*p+3}]"
            c = "0" if first else f"v[{acc}:{acc+15}]"
            if vform and p == 0:
                a(f"v_mfma_f32_32x32x16_bf16 v[{acc}:{acc+15}], {x}, {w}, {c}")
            else:
                a(f"v_mfma_f32_32x32x16_bf16 v[{acc}:{acc+15}], {w}, {x}, {c}")

def p1_mainloop(a, vform):
    NC = 10
    a("s_waitcnt vmcnt(12)")
    a("s_barrier")
    p1_reads(a, 0, 0, 0)
    buf = 0
    for c in range(NC):
        for s in range(4):
            if s < 3:
                p1_reads(a, c, s+1, buf ^ 1)
                a("s_waitcnt lgkmcnt(6)")
                p1_mfma(a, buf, vform, c == 0 and s == 0)
            else:
                a("s_waitcnt lgkmcnt(0)")
                if c + 1 < NC:
                    rem = 6 if c + 2 < NC else 0
                    a(f"s_waitcnt vmcnt({rem})")
                    a("s_barrier")
                    if c + 3 < NC:
                        p1_dma(a, c + 3)
                    p1_reads(a, c + 1, 0, buf ^ 1)
                p1_mfma(a, buf, vform, False)
            buf ^= 1

def p1_load_consts(a, ld=""):
    a(f"""
    s_lshl_b32 s40, s{S_PA}, 6
    s_lshl_b32 s41, s{S_PB}, 6
    s_cmp_eq_u32 s{S_ISH}, 1
    s_cselect_b32 s42, 1920, 0
    s_add_u32 s41, s41, s42
    s_sub_u32 s41, s41, 64                 ; so that col = s41 + tid for tid in 64..127
    v_cmp_gt_u32 vcc, 64, v0
    v_mov_b32 v2, s41
    v_mov_b32 v3, s40
    v_cndmask_b32 v2, v2, v3, vcc
    v_add_u32 v2, v2, v0
    v_lshlrev_b32 v2, 2, v2
    s_mov_b32 s42, {OFF_CS}
    v_cmp_gt_u32 vcc, 128, v0
    s_and_saveexec_b64 s[44:45], vcc
    s_cbranch_execz Lp1_c1
    buffer_load_dword v4, v2, s[{SRD_WS}:{SRD_WS+3}], s42 offen {ld}
    v_lshlrev_b32 v5, 2, v0
    s_waitcnt vmcnt(0)
    ds_write_b32 v5, v4 offset:0
Lp1_c1:
    s_mov_b64 exec, s[44:45]
    """.replace("ds_write_b32 v5, v4 offset:0", f"v_add_u32 v5, {L_CS}, v5\n ds_write_b32 v5, v4"))
    srd(a, 48, P_B1, P_B1+1, B1B)
    a(f"""
    s_lshl_b32 s40, s{S_PB}, 7
    v_subrev_u32 v2, 128, v0
    v_cmp_gt_u32 vcc, 64, v2
    s_and_saveexec_b64 s[44:45], vcc
    s_cbranch_execz Lp1_c2
    v_lshlrev_b32 v3, 1, v2
    buffer_load_ushort v4, v3, s[48:51], s40 offen
    v_lshlrev_b32 v5, 2, v2
    v_add_u32 v5, {L_B1}, v5
    s_waitcnt vmcnt(0)
    v_lshlrev_b32 v4, 16, v4
    ds_write_b32 v5, v4
Lp1_c2:
    s_mov_b64 exec, s[44:45]
    v_subrev_u32 v2, 256, v0
    v_cmp_gt_u32 vcc, 256, v2
    s_and_saveexec_b64 s[44:45], vcc
    s_cbranch_execz Lp1_c3
    v_add_u32 v3, s{S_T0}, v2
    v_lshlrev_b32 v3, 4, v3
    buffer_load_dwordx2 v[4:5], v3, s[{SRD_WS}:{SRD_WS+3}], 0 offen offset:{OFF_STATS} {ld}
    v_lshlrev_b32 v6, 2, v2
    v_add_u32 v6, {L_M}, v6
    s_waitcnt vmcnt(0)
    ds_write_b32 v6, v4
    ds_write_b32 v6, v5 offset:1024
Lp1_c3:
    s_mov_b64 exec, s[44:45]
    s_and_b32 s40, s{S_W}, 3
    s_lshl_b32 s40, s40, 6
    s_add_u32 s40, s40, s{S_T0}
    v_and_b32 v2, 31, v1
    v_add_u32 v2, s40, v2
    v_lshlrev_b32 v2, 4, v2
    buffer_load_dwordx4 v[172:175], v2, s[{SRD_WS}:{SRD_WS+3}], 0 offen offset:{OFF_STATS} {ld}
    buffer_load_dwordx4 v[176:179], v2, s[{SRD_WS}:{SRD_WS+3}], 0 offen offset:{OFF_STATS+512} {ld}
    s_waitcnt vmcnt(0) lgkmcnt(0)
    s_barrier
    """)

def epi_T(a, p, gelu, st):
    for i in range(2):
        b = 172 + 4*i
        if gelu:
            a(f"v_mov_b32 v{180+i}, v{b+2}")
        else:
            if p == 0:
                a(f"s_cmp_eq_u32 s{S_TYPEA}, 0")
                a(f"s_cselect_b64 vcc, -1, 0")
                a(f"v_cndmask_b32 v{180+i}, v{b+1}, v{b+3}, vcc")
            else:
                a(f"v_mov_b32 v{180+i}, v{b+1}")
        a(f"v_mul_f32 v{182+i}, v{180+i}, v{b}")
        a(f"v_sub_f32 v{182+i}, 0, v{182+i}")
    a(f"""
    s_lshr_b32 s40, s{S_W}, 2
    s_lshl_b32 s41, s40, 7
    v_lshrrev_b32 v2, 5, v1
    v_lshlrev_b32 v2, 5, v2
    v_add_u32 v2, s41, v2
    v_add_u32 v2, {L_CS}, v2
    """)
    a(f"""
    s_and_b32 s42, s{S_W}, 3
    s_lshl_b32 s42, s42, 6
    s_add_u32 s42, s42, s{S_T0}
    v_and_b32 v3, 31, v1
    v_add_u32 v3, s42, v3
    v_lshlrev_b32 v3, 4, v3
    v_lshrrev_b32 v4, 5, v1
    v_lshl_add_u32 v3, v4, 15, v3
    s_lshl_b32 s43, s{S_PA if p == 0 else S_PB}, 3
    s_lshl_b32 s44, s40, 2
    s_add_u32 s43, s43, s44
    s_lshl_b32 s43, s43, 15
    s_add_u32 s43, s43, {OFF_H if gelu else OFF_QK}
    """)
    if gelu:
        a(f"s_mov_b32 s46, {fhex(GC1)}")
        a(f"s_mov_b32 s47, {fhex(GC2)}")
    for j in range(2):
        a(f"ds_read_b128 v[184:187], v2 offset:{p*256 + j*64}")
        a(f"ds_read_b128 v[188:191], v2 offset:{p*256 + j*64 + 16}")
        if gelu:
            a(f"ds_read_b128 v[192:195], v2 offset:{L_B1 - L_CS + j*64}")
            a(f"ds_read_b128 v[196:199], v2 offset:{L_B1 - L_CS + j*64 + 16}")
        a("s_waitcnt lgkmcnt(0)")
        for i in range(2):
            acc = ACC + 32*i + 16*p + 8*j
            T = 200
            for e in range(8):
                if gelu:
                    a(f"v_fma_f32 v{T+e}, v{182+i}, v{184+e}, v{192+e}")
                else:
                    a(f"v_mul_f32 v{T+e}, v{182+i}, v{184+e}")
            for e in range(8):
                a(f"v_fma_f32 v{acc+e}, v{180+i}, v{acc+e}, v{T+e}")
            if gelu:
                for e in range(8):
                    a(f"v_mul_f32 v{T+e}, v{acc+e}, v{acc+e}")
                a(f"v_mov_b32 v{T+8}, s46")
                for e in range(8):
                    a(f"v_fma_f32 v{T+e}, v{T+e}, s47, v{T+8}")
                for e in range(8):
                    a(f"v_mul_f32 v{T+e}, v{T+e}, v{acc+e}")
                for e in range(8):
                    a(f"v_exp_f32 v{T+e}, v{T+e}")
                for e in range(8):
                    a(f"v_add_f32 v{T+e}, 1.0, v{T+e}")
                for e in range(8):
                    a(f"v_rcp_f32 v{T+e}, v{T+e}")
                for e in range(8):
                    a(f"v_mul_f32 v{acc+e}, v{acc+e}, v{T+e}")
            PK = 216 + 4*i
            for e in range(4):
                a(f"v_cvt_pk_bf16_f32 v{PK+e}, v{acc+2*e}, v{acc+2*e+1}")
            a(f"s_add_u32 s44, s43, {j*65536}")
            a(f"buffer_store_dwordx4 v[{PK}:{PK+3}], v3, s[{SRD_WS}:{SRD_WS+3}], s44 offen offset:{i*512} {st}")

def epi_V(a, st):
    a(f"""
    v_and_b32 v2, 31, v1
    v_lshrrev_b32 v3, 2, v2
    v_and_b32 v3, 3, v3
    v_and_b32 v4, 1, v3
    v_lshrrev_b32 v3, 1, v3
    v_lshl_or_b32 v3, v4, 1, v3            ; swap
    v_lshlrev_b32 v3, 2, v3
    v_and_b32 v4, 3, v2
    v_add_u32 v3, v3, v4
    v_and_b32 v4, 16, v2
    v_add_u32 v3, v3, v4                   ; nsrc
    s_lshr_b32 s40, s{S_W}, 2
    s_lshl_b32 s41, s40, 5
    v_add_u32 v3, s41, v3
    v_lshlrev_b32 v4, 2, v3
    v_add_u32 v4, {L_CS}, v4
    ds_read_b32 v184, v4
    s_sub_u32 s42, s{S_PA}, 20
    s_lshl_b32 s42, s42, 6
    v_add_u32 v3, s42, v3
    v_lshlrev_b32 v3, 5, v3
    v_lshrrev_b32 v4, 5, v1
    v_lshl_add_u32 v3, v4, 4, v3           ; voffset
    s_and_b32 s42, s{S_W}, 3
    s_lshl_b32 s42, s42, 6
    s_add_u32 s43, s42, s{S_T0}
    s_lshr_b32 s43, s43, 4
    s_mul_i32 s43, s43, 20480
    s_add_u32 s43, s43, {OFF_V}
    v_lshlrev_b32 v4, 4, v4
    s_lshl_b32 s42, s42, 2
    v_add_u32 v4, s42, v4
    v_add_u32 v4, {L_M}, v4
    s_waitcnt lgkmcnt(0)
    v_sub_f32 v184, 0, v184                ; -cs
    """)
    for i in range(2):
        for j in range(2):
            o = (32*i + 16*j)*4
            a(f"ds_read_b128 v[188:191], v4 offset:{o}")
            a(f"ds_read_b128 v[192:195], v4 offset:{o + 32}")
            a(f"ds_read_b128 v[196:199], v4 offset:{L_R - L_M + o}")
            a(f"ds_read_b128 v[200:203], v4 offset:{L_R - L_M + o + 32}")
            a("s_waitcnt lgkmcnt(0)")
            acc = ACC + 32*i + 8*j
            for e in range(8):
                a(f"v_fma_f32 v{acc+e}, v{188+e}, v184, v{acc+e}")
            for e in range(8):
                a(f"v_mul_f32 v{acc+e}, v{acc+e}, v{196+e}")
            PK = 216 + 4*(j)
            for e in range(4):
                a(f"v_cvt_pk_bf16_f32 v{PK+e}, v{acc+2*e}, v{acc+2*e+1}")
            a(f"s_add_u32 s44, s43, {(2*i+j)*20480}")
            a(f"buffer_store_dwordx4 v[{PK}:{PK+3}], v3, s[{SRD_WS}:{SRD_WS+3}], s44 offen {st}")

def p1_body(a, Lside, st="", ld="", presync=None, mid=None):
    p1_decode(a, Lside)
    p1_setup(a)
    for c in range(3):
        p1_dma(a, c)
    a(f"""
    s_cmp_eq_u32 s{S_TYPEA}, 2
    s_cbranch_scc1 Lp1_vform
    """)
    p1_mainloop(a, False)
    a("s_branch Lp1_epi")
    a("Lp1_vform:")
    p1_mainloop(a, True)
    a("Lp1_epi:")
    if presync: presync(a)
    p1_load_consts(a, ld)
    a("s_nop 7")
    a(f"""
    s_cmp_eq_u32 s{S_TYPEA}, 2
    s_cbranch_scc1 Lp1_epiV
    """)
    epi_T(a, 0, False, st)
    a("s_branch Lp1_epiB")
    a("Lp1_epiV:")
    epi_V(a, st)
    a("Lp1_epiB:")
    a(f"""
    s_cmp_eq_u32 s{S_ISH}, 1
    s_cbranch_scc1 Lp1_epiH
    """)
    epi_T(a, 1, False, st)
    a("s_branch Lp1_done")
    a("Lp1_epiH:")
    epi_T(a, 1, True, st)
    a("Lp1_done:")
```

```python
from common import *
from side import *

LK = 0
LV = 24576
P2_LDS = LV + 32*672 + 512
S_H=12; S_QB=13; S_ODD=14; S_KB0=15
SC = 64
OA = 208
QF1 = 224; QF2 = 228
KF = 232
KADDR = 248; KADDR3 = 249; VADDR = 250
MX = 251; TMP = 252; TMP2 = 253
PM = 16
PF = 24

def p2_decode(a):
    a(f"""
    s_and_b32 s40, s{S_WG}, 7
    s_lshr_b32 s41, s{S_WG}, 3
    s_and_b32 s42, s41, 3
    s_lshl_b32 s{S_H}, s40, 2
    s_add_u32 s{S_H}, s{S_H}, s42          ; head
    s_lshr_b32 s{S_QB}, s41, 2             ; qb
    s_and_b32 s{S_ODD}, s{S_H}, 1
    """)

def p2_loads(a, ld=""):
    a(f"""
    s_lshr_b32 s40, s{S_H}, 1
    s_mul_i32 s40, s40, 5
    s_mul_i32 s41, s{S_ODD}, 3
    s_add_u32 s41, s41, s40                ; o1
    s_add_u32 s42, s41, 1                  ; o2
    s_add_u32 s43, s40, 2                  ; o3
    s_lshl_b32 s44, s{S_QB}, 8             ; Tq0
    s_lshl_b32 s45, s{S_W}, 5
    s_add_u32 s45, s45, s44
    v_and_b32 v2, 31, v1
    v_add_u32 v2, s45, v2
    v_lshlrev_b32 v2, 4, v2                ; token*16
    v_lshrrev_b32 v3, 5, v1                ; hf
    v_lshl_add_u32 v4, v3, 15, v2          ; + hf*32768 (o2 = o1+1)
    s_lshl_b32 s46, s41, 15
    s_add_u32 s46, s46, {OFF_QK}
    buffer_load_dwordx4 v[{QF1}:{QF1+3}], v4, s[{SRD_WS}:{SRD_WS+3}], s46 offen {ld}
    s_lshl_b32 s46, s43, 15
    s_add_u32 s46, s46, {OFF_QK}
    buffer_load_dwordx4 v[{QF2}:{QF2+3}], v2, s[{SRD_WS}:{SRD_WS+3}], s46 offen {ld}
    ; ---- K DMAs: 24 instrs: n = 3w + q : oct = n / 8, seg = n % 8 (64 tokens each) -> use n = w + 8q: oct = q, seg = w
    s_sub_u32 s47, s44, 256
    s_lshl_b32 s48, s{S_W}, 6
    s_add_u32 s47, s47, s48
    s_lshl_b32 s47, s47, 4                 ; *16 bytes
    v_lshlrev_b32 v5, 4, v1
    s_lshl_b32 s49, s{S_W}, 10             ; seg*1024
    s_cmp_eq_u32 s{S_QB}, 0
    s_cselect_b32 s50, 1, 0
    s_cmp_lt_u32 s{S_W}, 4
    s_cselect_b32 s51, 1, 0
    s_and_b32 s50, s50, s51
    s_cmp_eq_u32 s50, 1
    s_cbranch_scc1 Lp2_skipK
    """)
    for q, so in enumerate((41, 42, 43)):
        a(f"""
        s_add_u32 s46, s{so}, 80
        s_lshl_b32 s46, s46, 15
        s_add_u32 s46, s46, {OFF_QK}
        s_add_u32 s46, s46, s47
        s_add_u32 m0, s49, {LK + q*8192}
        s_nop 0
        buffer_load_dwordx4 v5, s[{SRD_WS}:{SRD_WS+3}], s46 offen lds {ld}
        """)
    a(f"""
Lp2_skipK:
    v_cmp_lt_u32 vcc, 20, v1
    v_subrev_u32 v6, 21, v1
    v_cndmask_b32 v6, v1, v6, vcc          ; d
    v_cndmask_b32 v7, 0, 1, vcc            ; hf
    v_lshlrev_b32 v6, 5, v6
    v_lshl_add_u32 v6, v7, 4, v6           ; d*32 + hf*16
    s_mul_i32 s46, s{S_H}, 640
    v_add_u32 v6, s46, v6
    s_lshr_b32 s47, s44, 4
    s_sub_u32 s47, s47, 16
    s_add_u32 s47, s47, s{S_W}
    s_mul_i32 s47, s47, 20480
    s_add_u32 s47, s47, {OFF_V}
    s_mul_i32 s48, s{S_W}, 672
    s_mov_b32 s50, 0xffefffff
    s_mov_b32 s51, 0x000001ff
    v_mov_b32 v8, 0x3f803f80
    v_mov_b32 v9, 0x3f803f80
    v_mov_b32 v10, 0x3f803f80
    v_mov_b32 v11, 0x3f803f80
    v_lshlrev_b32 v12, 4, v1
    v_add_u32 v12, s48, v12
    s_mov_b32 s52, 0x00100000
    s_mov_b32 s53, 0x00000200
    s_mov_b64 exec, s[52:53]
    """)
    for q in range(4):
        a(f"ds_write_b128 v12, v[8:11] offset:{LV + q*8*672}")
    a("s_mov_b64 exec, s[50:51]")
    for q in range(4):
        if q < 2:
            a(f"s_cmp_eq_u32 s{S_QB}, 0")
            a(f"s_cbranch_scc1 Lp2_skipV{q}")
        a(f"""
        s_add_u32 m0, s48, {LV + q*8*672}
        s_add_u32 s46, s47, {q*8*20480}
        buffer_load_dwordx4 v6, s[{SRD_WS}:{SRD_WS+3}], s46 offen lds {ld}
        """)
        if q < 2:
            a(f"Lp2_skipV{q}:")
    a("s_mov_b64 exec, -1")

def p2_setup(a):
    a(f"""
    v_and_b32 v2, 31, v1
    v_lshrrev_b32 v3, 5, v1
    v_lshlrev_b32 v3, 2, v3
    v_sub_u32 v2, v2, v3
    """)
    for r in range(16):
        jj = 8*(r >> 2) + (r & 3)
        a(f"v_cmp_le_i32 s[{20+2*r}:{21+2*r}], {jj}, v2")
    a("v_mov_b32 v4, 0xffff")
    a("v_mov_b32 v5, 0xffff0000")
    for k in range(8):
        a(f"v_cndmask_b32 v6, 0, v4, s[{20+4*k}:{21+4*k}]")
        a(f"v_cndmask_b32 v7, 0, v5, s[{22+4*k}:{23+4*k}]")
        a(f"v_or_b32 v{PM+k}, v6, v7")
    a(f"""
    v_and_b32 v2, 31, v1
    v_lshrrev_b32 v3, 5, v1
    s_lshl_b32 s54, s{S_W}, 9              ; 32w tokens *16B
    v_lshlrev_b32 v4, 4, v2
    v_add_u32 v4, s54, v4
    v_add_u32 v{KADDR3}, {LK + 16384}, v4
    v_lshl_add_u32 v{KADDR}, v3, 13, v4    ; + hf*8192
    s_mul_i32 s54, s{S_W}, 1344            ; 2w blocks * 672
    v_mul_u32_u24 v4, 336, v3
    v_lshl_add_u32 v4, v2, 4, v4
    v_add_u32 v4, s54, v4
    v_add_u32 v{VADDR}, {LV}, v4
    """)

def p2_qfix(a):
    a(f"""
    s_cmp_eq_u32 s{S_ODD}, 0
    s_cbranch_scc1 Lp2_qeven
    v_mov_b32 v{QF2}, 0
    v_mov_b32 v{QF2+1}, 0
    s_branch Lp2_qdone
Lp2_qeven:
    v_mov_b32 v{QF2+2}, 0
    v_mov_b32 v{QF2+3}, 0
Lp2_qdone:
    s_mov_b32 s54, 0
    s_mov_b32 s55, -1
    s_mov_b64 exec, s[54:55]
    v_mov_b32 v{QF2}, 0
    v_mov_b32 v{QF2+1}, 0
    v_mov_b32 v{QF2+2}, 0
    v_mov_b32 v{QF2+3}, 0
    s_mov_b64 exec, -1
    """)

def p2_compute(a, st=""):
    NEG = fhex(-1e30)
    a(f"""
    s_lshl_b32 s{S_KB0}, s{S_QB}, 3
    s_add_u32 s{S_KB0}, s{S_KB0}, s{S_W}
    s_sub_u32 s{S_KB0}, s{S_KB0}, 8
    """)
    def kread(t, b):
        a(f"ds_read_b128 v[{KF+8*b}:{KF+8*b+3}], v{KADDR} offset:{t*512}")
        a(f"ds_read_b128 v[{KF+8*b+4}:{KF+8*b+7}], v{KADDR3} offset:{t*512}")
    kread(0, 0)
    for t in range(9):
        b = t & 1
        if t + 1 < 9:
            kread(t + 1, b ^ 1)
            a("s_waitcnt lgkmcnt(2)")
        else:
            a("s_waitcnt lgkmcnt(0)")
        sc = SC + 16*t
        L = a.label("qk")
        if t < 8:
            a(f"s_cmp_lt_i32 s{S_KB0}, {-t}")
            a(f"s_cbranch_scc1 {L}_inv")
        a(f"v_mfma_f32_32x32x16_bf16 v[{sc}:{sc+15}], v[{KF+8*b}:{KF+8*b+3}], v[{QF1}:{QF1+3}], 0")
        a(f"v_mfma_f32_32x32x16_bf16 v[{sc}:{sc+15}], v[{KF+8*b+4}:{KF+8*b+7}], v[{QF2}:{QF2+3}], v[{sc}:{sc+15}]")
        if t < 8:
            a(f"s_branch {L}_ok")
            a(f"{L}_inv:")
            for r in range(16):
                a(f"v_mov_b32 v{sc+r}, {NEG}")
            a(f"{L}_ok:")
    a("s_nop 7")
    a("s_nop 7")
    for r in range(16):
        a(f"v_cndmask_b32 v{SC+r}, v{SC+r}, v{SC+128+r}, s[{20+2*r}:{21+2*r}]")
    a(f"v_max3_f32 v{MX}, v{SC}, v{SC+1}, v{SC+2}")
    a(f"v_max3_f32 v{TMP}, v{SC+3}, v{SC+4}, v{SC+5}")
    k = 6
    tog = 0
    while k + 1 < 128:
        d = MX if tog == 0 else TMP
        a(f"v_max3_f32 v{d}, v{d}, v{SC+k}, v{SC+k+1}")
        k += 2; tog ^= 1
    a(f"v_max_f32 v{MX}, v{MX}, v{TMP}")
    a(f"v_mov_b32 v{TMP}, v{MX}")
    a("s_nop 1")
    a(f"v_permlane32_swap_b32 v{MX}, v{TMP}")
    a("s_nop 1")
    a(f"v_max_f32 v{MX}, v{MX}, v{TMP}")
    def vread(t, j, dst):
        a(f"ds_read_b128 v[{dst}:{dst+3}], v{VADDR} offset:{(2*t+j)*672}")
    first = True
    for t in range(8):
        sc = SC + 16*t
        for r in range(16):
            a(f"v_sub_f32 v{sc+r}, v{sc+r}, v{MX}")
        for r in range(16):
            a(f"v_exp_f32 v{sc+r}, v{sc+r}")
        P = PF
        for e in range(8):
            a(f"v_cvt_pk_bf16_f32 v{P+e}, v{sc+2*e}, v{sc+2*e+1}")
        if t == 0:
            for e in range(8):
                a(f"v_and_b32 v{32+e}, v{P+e}, v{PM+e}")
            for e in range(8):
                a(f"v_xor_b32 v{P+e}, v{P+e}, v{32+e}")
            vread(8, 0, 40); vread(8, 1, 44)
            a("s_waitcnt lgkmcnt(0)")
            a(f"v_mfma_f32_32x32x16_bf16 v[{OA}:{OA+15}], v[40:43], v[32:35], 0")
            a(f"v_mfma_f32_32x32x16_bf16 v[{OA}:{OA+15}], v[44:47], v[36:39], v[{OA}:{OA+15}]")
        L = a.label("pv")
        a(f"s_cmp_lt_i32 s{S_KB0}, {-t}")
        a(f"s_cbranch_scc1 {L}")
        vread(t, 0, 48); vread(t, 1, 52)
        a("s_waitcnt lgkmcnt(0)")
        a(f"v_mfma_f32_32x32x16_bf16 v[{OA}:{OA+15}], v[48:51], v[{P}:{P+3}], v[{OA}:{OA+15}]")
        a(f"v_mfma_f32_32x32x16_bf16 v[{OA}:{OA+15}], v[52:55], v[{P+4}:{P+7}], v[{OA}:{OA+15}]")
        a(f"{L}:")
        a("s_nop 1")
    a("s_nop 7")
    a("s_nop 7")
    a(f"""
    v_mov_b32 v{TMP}, v{OA+8}
    v_mov_b32 v{TMP2}, v{OA+8}
    s_nop 1
    v_permlane32_swap_b32 v{TMP}, v{TMP2}
    s_nop 1
    v_rcp_f32 v{TMP2}, v{TMP2}
    s_nop 0
    """)
    for r in range(12):
        a(f"v_mul_f32 v{OA+r}, v{OA+r}, v{TMP2}")
    for e in range(6):
        a(f"v_cvt_pk_bf16_f32 v{24+e}, v{OA+2*e}, v{OA+2*e+1}")
    a(f"""
    s_lshl_b32 s40, s{S_QB}, 8
    s_lshl_b32 s41, s{S_W}, 5
    s_add_u32 s40, s40, s41
    v_and_b32 v2, 31, v1
    v_add_u32 v2, s40, v2                  ; token
    v_lshlrev_b32 v3, 4, v2
    v_lshrrev_b32 v4, 5, v1
    v_lshl_add_u32 v3, v4, 15, v3
    s_lshl_b32 s41, s{S_H}, 16
    s_add_u32 s41, s41, {OFF_O}
    buffer_store_dwordx4 v[24:27], v3, s[{SRD_WS}:{SRD_WS+3}], s41 offen {st}
    v_lshlrev_b32 v3, 3, v2
    s_lshl_b32 s41, s{S_H}, 14
    s_add_u32 s41, s41, {OFF_O4}
    s_mov_b32 s54, -1
    s_mov_b32 s55, 0
    s_mov_b64 exec, s[54:55]
    buffer_store_dwordx2 v[28:29], v3, s[{SRD_WS}:{SRD_WS+3}], s41 offen {st}
    s_mov_b64 exec, -1
    """)

def p2_body(a, st="", ld="", presync=None):
    p2_decode(a)
    if presync: presync(a)
    p2_loads(a, ld)
    p2_setup(a)
    a("s_waitcnt vmcnt(0) lgkmcnt(0)")
    p2_qfix(a)
    a("s_barrier")
    p2_compute(a, st)
```

```python
from common import *
from side import *

LB3 = [0, 40960, 81920]
L_RED = 0
P3_LDS = 3*40960
S_RBK=12; S_CB=13; S_T0_3=14; S_WB=15; S_MW=16; S_AH=17; S_AO=18; S_AO4=19
ACC3 = 64
AF = 96
BF = 128
VLANE = 170
VAH = 171
VAO4 = 172
VBR = 173
NSTEP = 68

def p3_decode(a):
    a(f"""
    s_and_b32 s40, s{S_WG}, 7
    s_lshr_b32 s41, s{S_WG}, 3
    s_lshr_b32 s42, s40, 1                 ; RG
    s_and_b32 s43, s40, 1                  ; CG
    s_and_b32 s44, s41, 7
    s_lshl_b32 s{S_RBK}, s42, 3
    s_add_u32 s{S_RBK}, s{S_RBK}, s44
    s_lshr_b32 s44, s41, 3
    s_lshl_b32 s{S_CB}, s43, 2
    s_add_u32 s{S_CB}, s{S_CB}, s44        ; cb
    s_lshl_b32 s{S_T0_3}, s{S_RBK}, 6
    """)

def p3_setup(a):
    a(f"""
    v_lshlrev_b32 v{VLANE}, 4, v1
    s_mul_i32 s{S_WB}, s{S_CB}, 68
    s_add_u32 s{S_WB}, s{S_WB}, s{S_W}
    s_mul_i32 s{S_WB}, s{S_WB}, 5120
    s_add_u32 s{S_WB}, s{S_WB}, {OFF_W3}
    s_mul_i32 s{S_MW}, s{S_W}, 5120
    s_and_b32 s40, s{S_W}, 3
    s_lshl_b32 s40, s40, 4
    s_add_u32 s40, s40, s{S_T0_3}
    v_and_b32 v2, 15, v1
    v_add_u32 v2, s40, v2                  ; token
    v_lshrrev_b32 v3, 4, v1                ; g
    v_lshlrev_b32 v4, 4, v2
    v_lshl_add_u32 v{VAH}, v3, 15, v4
    v_lshlrev_b32 v4, 3, v2
    v_lshl_add_u32 v{VAO4}, v3, 15, v4     ; g*2 heads*16384
    v_mov_b32 v{VBR}, v{VLANE}
    """)

def p3_dmaB(a, c, ld):
    nsteps = min(8, NSTEP - 8*c)
    L = None
    if nsteps < 8:
        L = a.label("p3skip")
        a(f"s_cmp_ge_u32 s{S_W}, {nsteps}")
        a(f"s_cbranch_scc1 {L}")
    for ct in range(5):
        a(f"s_add_u32 m0, s{S_MW}, {LB3[c%3] + ct*1024}")
        a(f"s_add_u32 s40, s{S_WB}, {c*8*5120 + ct*1024}")
        a(f"buffer_load_dwordx4 v{VLANE}, s[{SRD_WS}:{SRD_WS+3}], s40 offen lds {ld}")
    if L:
        a(f"{L}:")

def a_loads_for_step(a, s_expr_base, step, slot, ld):
    pass

def p3_aload(a, c, u, ld):
    base = 8*c + 2*u
    if base >= NSTEP: return 0
    dst = AF + 4*((c & 1)*4 + u)
    if base < 48:
        a(f"s_add_u32 s40, s{S_AH}, {OFF_H + base*4*32768}")
        a(f"buffer_load_dwordx4 v[{dst}:{dst+3}], v{VAH}, s[{SRD_WS}:{SRD_WS+3}], s40 offen {ld}")
        return 1
    elif base < 64:
        a(f"s_add_u32 s40, s{S_AH}, {OFF_O + (base-48)*4*32768}")
        a(f"buffer_load_dwordx4 v[{dst}:{dst+3}], v{VAH}, s[{SRD_WS}:{SRD_WS+3}], s40 offen {ld}")
        return 1
    else:
        a(f"s_add_u32 s40, s{S_AO4}, {OFF_O4 + (base-64)*8*16384}")
        a(f"buffer_load_dwordx2 v[{dst}:{dst+1}], v{VAO4}, s[{SRD_WS}:{SRD_WS+3}], s40 offen {ld}")
        a(f"s_add_u32 s40, s40, 16384")
        a(f"buffer_load_dwordx2 v[{dst+2}:{dst+3}], v{VAO4}, s[{SRD_WS}:{SRD_WS+3}], s40 offen {ld}")
        return 2

def p3_main(a, ld, sync_o=None):
    NC = 9
    a(f"""
    s_lshr_b32 s41, s{S_W}, 2              ; kg
    s_lshl_b32 s{S_AH}, s41, 17            ; kg*4*32768
    s_lshl_b32 s{S_AO4}, s41, 17           ; kg*8*16384
    s_mul_i32 s42, s41, 5120
    v_add_u32 v{VBR}, s42, v{VLANE}
    """)
    for r in range(20):
        a(f"v_mov_b32 v{ACC3+r}, 0")
    def issue(c):
        if c == 6 and sync_o: sync_o(a)
        p3_dmaB(a, c, ld)
        n = 0
        for u in range(4):
            n += p3_aload(a, c, u, ld)
        return n
    issue(0)
    issue(1)
    for c in range(NC):
        if c + 1 < NC:
            if c + 1 == 8:
                newer = 4
            else:
                newer = 9
            a(f"s_waitcnt vmcnt({newer})")
        else:
            a("s_waitcnt vmcnt(0)")
        a("s_barrier")
        nsub = 4 if c < 8 else 2
        st = LB3[c % 3]
        def bread(u, b):
            for ct in range(5):
                a(f"ds_read_b128 v[{BF+20*b+4*ct}:{BF+20*b+4*ct+3}], v{VBR} offset:{st + 2*u*5120 + ct*1024}") if st + 2*u*5120 + ct*1024 < 65536 else \
                a(f"ds_read_b128 v[{BF+20*b+4*ct}:{BF+20*b+4*ct+3}], v{VBR+1} offset:{st + 2*u*5120 + ct*1024 - 65536}")
        bread(0, 0)
        for u in range(nsub):
            b = u & 1
            if u + 1 < nsub:
                bread(u + 1, b ^ 1)
                a("s_waitcnt lgkmcnt(5)")
            else:
                a("s_waitcnt lgkmcnt(0)")
            af = AF + 4*((c & 1)*4 + u)
            for ct in range(5):
                acc = ACC3 + 4*ct
                a(f"v_mfma_f32_16x16x32_bf16 v[{acc}:{acc+3}], v[{BF+20*b+4*ct}:{BF+20*b+4*ct+3}], v[{af}:{af+3}], v[{acc}:{acc+3}]")
        if c + 2 < NC:
            issue(c + 2)

def p3_epilogue(a):
    a(f"""
    s_barrier
    s_lshr_b32 s41, s{S_W}, 2
    s_and_b32 s42, s{S_W}, 3
    s_mul_i32 s42, s42, 5120
    v_add_u32 v2, s42, v{VLANE}
    s_cmp_eq_u32 s41, 0
    s_cbranch_scc1 Lp3_k0
    s_nop 7
    """)
    for ct in range(5):
        a(f"ds_write_b128 v2, v[{ACC3+4*ct}:{ACC3+4*ct+3}] offset:{ct*1024}")
    a(f"""
    s_waitcnt lgkmcnt(0)
    s_barrier
    s_branch Lp3_end
Lp3_k0:
    """)
    srd(a, 20, P_B2, P_B2+1, B2B)
    srd(a, 24, P_OUT, P_OUT+1, OUTB)
    a(f"""
    s_and_b32 s42, s{S_W}, 3
    s_lshl_b32 s42, s42, 4
    s_add_u32 s42, s42, s{S_T0_3}
    v_and_b32 v3, 15, v1
    v_add_u32 v3, s42, v3
    v_mul_u32_u24 v3, 1280, v3
    v_lshrrev_b32 v4, 4, v1
    v_lshlrev_b32 v4, 3, v4                ; g*8 bytes
    s_mul_i32 s43, s{S_CB}, 160
    v_add_u32 v4, s43, v4
    v_add_u32 v3, v3, v4
    """)
    for ct in range(5):
        a(f"buffer_load_dwordx2 v[{96+2*ct}:{97+2*ct}], v3, s[{SRD_X}:{SRD_X+3}], 0 offen offset:{32*ct}")
        a(f"buffer_load_dwordx2 v[{108+2*ct}:{109+2*ct}], v4, s[20:23], 0 offen offset:{32*ct}")
    a("s_barrier")
    for ct in range(5):
        a(f"ds_read_b128 v[{128+4*ct}:{128+4*ct+3}], v2 offset:{ct*1024}")
    a("s_waitcnt vmcnt(0) lgkmcnt(0)")
    for ct in range(5):
        for r in range(4):
            acc = ACC3 + 4*ct + r
            xr = 96 + 2*ct + (r >> 1); br = 108 + 2*ct + (r >> 1)
            a(f"v_add_f32 v{acc}, v{acc}, v{128+4*ct+r}")
            if r & 1:
                a(f"v_and_b32 v5, 0xffff0000, v{xr}")
                a(f"v_and_b32 v6, 0xffff0000, v{br}")
            else:
                a(f"v_lshlrev_b32 v5, 16, v{xr}")
                a(f"v_lshlrev_b32 v6, 16, v{br}")
            a(f"v_add_f32 v5, v5, v6")
            a(f"v_add_f32 v{acc}, v{acc}, v5")
        a(f"v_cvt_pk_bf16_f32 v{150+2*ct}, v{ACC3+4*ct}, v{ACC3+4*ct+1}")
        a(f"v_cvt_pk_bf16_f32 v{151+2*ct}, v{ACC3+4*ct+2}, v{ACC3+4*ct+3}")
        a(f"buffer_store_dwordx2 v[{150+2*ct}:{151+2*ct}], v3, s[24:27], 0 offen offset:{32*ct}")
    a("Lp3_end:")

def p3_body(a, ld="", presync=None, sync_o=None):
    p3_decode(a)
    p3_setup(a)
    a(f"v_add_u32 v{VBR+1}, 65536, v{VLANE}")
    if presync: presync(a)
    p3_main_wrap(a, ld, sync_o)
    p3_epilogue(a)

def p3_main_wrap(a, ld, sync_o):
    a(f"""
    s_lshr_b32 s41, s{S_W}, 2
    s_mul_i32 s42, s41, 5120
    v_add_u32 v{VBR}, s42, v{VLANE}
    v_add_u32 v{VBR+1}, 65536, v{VBR}
    """)
    p3_main(a, ld, sync_o)
```

```python
from common import *

S_WG=2; S_W=3
SRD_WS=4; SRD_X=8
P_X=64; P_WQKV=66; P_WO=68; P_BX=70; P_W1=72; P_B1=74; P_W2=76; P_B2=78; P_OUT=80; P_DBG=82; P_WS=84

def prologue(a):
    a(f"""
    s_load_dwordx16 s[64:79], s[0:1], 0
    s_load_dwordx4 s[80:83], s[0:1], 64
    s_load_dwordx2 s[84:85], s[0:1], 80
    v_lshrrev_b32 v2, 6, v0
    v_and_b32 v1, 63, v0
    s_nop 0
    v_readfirstlane_b32 s{S_W}, v2
    s_waitcnt lgkmcnt(0)
    """)
    srd(a, SRD_WS, P_WS, P_WS+1, WS_USED)
    srd(a, SRD_X, P_X, P_X+1, XB)

def dpp_reduce16(a, v, tmp=None):
    for r in (8, 4, 2, 1):
        a(f"s_nop 1")
        a(f"v_add_f32_dpp v{v}, v{v}, v{v} row_ror:{r} row_mask:0xf bank_mask:0xf")

def side_stats(a, SID, st=""):
    L = a.label("stats_end")
    a(f"""
    s_cmp_lt_u32 s{SID}, 8
    s_cbranch_scc1 {L}
    s_sub_u32 s13, s{SID}, 8
    s_lshl_b32 s13, s13, 6
    s_lshl_b32 s14, s{S_W}, 3
    s_add_u32 s13, s13, s14            ; R0
    s_mul_i32 s14, s13, 1280
    v_lshrrev_b32 v2, 4, v1            ; rg
    v_and_b32 v3, 15, v1               ; i
    v_mul_u32_u24 v4, 1280, v2
    v_lshl_add_u32 v4, v3, 4, v4
    v_add_u32 v4, s14, v4
    v_add_u32 v5, 5120, v4
    """)
    for g in range(2):
        for c in range(5):
            a(f"buffer_load_dwordx4 v[{16+20*g+4*c}:{19+20*g+4*c}], v{4+g}, s[{SRD_X}:{SRD_X+3}], 0 offen offset:{c*256}")
    a(f"""
    s_mov_b32 s15, {fhex(1.0/640)}
    s_mov_b32 s16, {fhex(EPS)}
    s_mov_b32 s17, {fhex(QSCALE)}
    """)
    for g in range(2):
        a(f"s_waitcnt vmcnt({5 if g == 0 else 0})")
        for k in range(20):
            a(f"v_lshlrev_b32 v{64+2*k}, 16, v{16+20*g+k}")
            a(f"v_and_b32 v{65+2*k}, 0xffff0000, v{16+20*g+k}")
        a("v_add_f32 v6, v64, v65")
        a("v_add_f32 v7, v66, v67")
        for k in range(2, 20, 2):
            a(f"v_add_f32 v6, v6, v{64+2*k}")
            a(f"v_add_f32 v7, v7, v{66+2*k}")
            a(f"v_add_f32 v6, v6, v{65+2*k}")
            a(f"v_add_f32 v7, v7, v{67+2*k}")
        a("v_add_f32 v6, v6, v7")
        dpp_reduce16(a, 6)
        a("v_mul_f32 v8, s15, v6")
        for k in range(40):
            a(f"v_sub_f32 v{64+k}, v{64+k}, v8")
        a("v_mul_f32 v6, v64, v64")
        a("v_mul_f32 v7, v65, v65")
        for k in range(2, 40, 2):
            a(f"v_fmac_f32 v6, v{64+k}, v{64+k}")
            a(f"v_fmac_f32 v7, v{65+k}, v{65+k}")
        a("v_add_f32 v6, v6, v7")
        dpp_reduce16(a, 6)
        a(f"""
        v_mul_f32 v6, s15, v6              ; var
        v_add_f32 v7, s16, v6
        v_rsq_f32 v9, v7                   ; r1
        s_nop 0
        v_mul_f32 v7, v9, v9
        v_mul_f32 v7, v7, v6               ; v2 = var*r1^2
        v_add_f32 v7, s16, v7
        v_rsq_f32 v7, v7                   ; r2
        s_nop 0
        v_mul_f32 v10, v9, v7              ; r12
        v_mul_f32 v11, s17, v9             ; r1c
        """)
        a(f"""
        v_add_u32 v12, {4*g}, v2
        v_add_u32 v12, s13, v12
        v_lshlrev_b32 v12, 4, v12
        v_cmp_eq_u32 vcc, 0, v3
        s_and_saveexec_b64 s[18:19], vcc
        buffer_store_dwordx4 v[8:11], v12, s[{SRD_WS}:{SRD_WS+3}], 0 offen offset:{OFF_STATS} {st}
        s_mov_b64 exec, s[18:19]
        s_nop 1
        """)
    a(f"{L}:")

def side_cs(a, SID, st=""):
    L = a.label("cs_end")
    a(f"""
    s_cmp_ge_u32 s{SID}, 27
    s_cbranch_scc1 {L}
    s_cmp_lt_u32 s{SID}, 15
    s_cselect_b32 s20, s{P_WQKV}, s{P_W1}
    s_cselect_b32 s21, s{P_WQKV+1}, s{P_W1+1}
    s_mov_b32 s22, {W1B}
    s_cselect_b32 s22, {WQKVB}, s22
    s_movk_i32 s14, 3072
    s_cselect_b32 s14, 3840, s14           ; stride
    s_cselect_b32 s15, 0, 15
    s_and_b32 s21, s21, 0xffff
    s_mov_b32 s23, 0x20000
    s_sub_u32 s15, s{SID}, s15
    s_lshl_b32 s15, s15, 8
    s_mul_i32 s16, s{S_W}, 80
    s_mul_i32 s16, s16, s14
    s_add_u32 s16, s16, s15
    v_lshrrev_b32 v2, 4, v1                ; rg
    v_and_b32 v3, 15, v1                   ; i
    v_mul_lo_u32 v4, v2, s14
    v_lshl_add_u32 v4, v3, 4, v4
    v_add_u32 v4, s16, v4
    s_lshl_b32 s17, s14, 2
    s_mov_b32 s18, 0
    """)
    for k in range(20):
        a(f"buffer_load_dwordx4 v[{16+4*k}:{19+4*k}], v4, s[20:23], s18 offen")
        a(f"s_add_u32 s18, s18, s17")
    for j in range(8):
        a(f"v_mov_b32 v{100+j}, 0")
    for k in range(20):
        a(f"s_waitcnt vmcnt({19-k})")
        for j in range(4):
            a(f"v_lshlrev_b32 v6, 16, v{16+4*k+j}")
            a(f"v_and_b32 v7, 0xffff0000, v{16+4*k+j}")
            a(f"v_add_f32 v{100+2*j}, v{100+2*j}, v6")
            a(f"v_add_f32 v{101+2*j}, v{101+2*j}, v7")
    a(f"""
    s_lshl_b32 s16, s{S_W}, 2
    v_add_u32 v5, s16, v2
    v_lshlrev_b32 v5, 9, v5
    v_lshl_add_u32 v5, v3, 5, v5
    ds_write_b128 v5, v[100:103]
    ds_write_b128 v5, v[104:107] offset:16
    s_waitcnt lgkmcnt(0)
    s_barrier
    s_cmp_ge_u32 s{S_W}, 2
    s_cbranch_scc1 {L}_skip
    v_lshlrev_b32 v5, 2, v0
    """)
    for k in range(32):
        a(f"ds_read_b32 v{16+k}, v5 offset:{k*512}")
    a("s_waitcnt lgkmcnt(0)")
    for k in range(1, 32):
        a(f"v_add_f32 v16, v16, v{16+k}")
    a(f"""
    s_lshl_b32 s16, s{SID}, 9
    v_add_u32 v5, s16, v5
    s_mov_b32 s16, {OFF_CS}
    buffer_store_dword v16, v5, s[{SRD_WS}:{SRD_WS+3}], s16 offen {st}
{L}_skip:
    s_barrier
{L}:
    """)

def side_w3_step(a, SSTEP, st=""):
    a(f"""
    s_cmp_lt_u32 s{SSTEP}, 48
    s_cselect_b32 s20, s{P_W2}, s{P_WO}
    s_cselect_b32 s21, s{P_W2+1}, s{P_WO+1}
    s_mov_b32 s22, {WOB}
    s_cselect_b32 s22, {W2B}, s22
    s_and_b32 s21, s21, 0xffff
    s_mov_b32 s23, 0x20000
    """)
    Lo = a.label("w3")
    for q in range(5):
        a(f"""
        s_mul_i32 s14, s{S_W}, 320
        s_add_u32 s14, s14, {64*q}
        v_add_u32 v2, s14, v1              ; P
        v_mul_u32_u24 v3, 52429, v2
        v_lshrrev_b32 v3, 22, v3           ; j = P/80  (P<2560)
        v_mul_u32_u24 v4, 80, v3
        v_sub_u32 v4, v2, v4               ; p
        v_and_b32 v5, 3, v3
        v_lshrrev_b32 v6, 3, v3            ; g
        v_and_b32 v7, 1, v6
        v_lshl_or_b32 v5, v7, 2, v5        ; h(j)
        v_lshlrev_b32 v5, 1, v5
        v_xor_b32 v4, v4, v5
        v_and_b32 v8, 7, v3                ; e
        """)
        a(f"""
        s_cmp_lt_u32 s{SSTEP}, 48
        s_cbranch_scc1 {Lo}_a{q}
        s_cmp_lt_u32 s{SSTEP}, 64
        s_cbranch_scc1 {Lo}_b{q}
        s_sub_u32 s15, s{SSTEP}, 64
        s_lshl_b32 s15, s15, 3
        v_lshrrev_b32 v9, 2, v8
        v_lshl_add_u32 v9, v6, 1, v9
        v_add_u32 v9, s15, v9              ; head
        v_and_b32 v10, 3, v8
        v_add_u32 v10, 16, v10             ; d
        v_mul_u32_u24 v9, 20, v9
        v_add_u32 v9, v9, v10              ; row
        s_branch {Lo}_c{q}
{Lo}_b{q}:
        s_sub_u32 s15, s{SSTEP}, 48
        s_lshl_b32 s15, s15, 1
        v_lshrrev_b32 v9, 1, v6
        v_add_u32 v9, s15, v9              ; head
        v_and_b32 v10, 3, v8
        v_lshl_add_u32 v10, v7, 2, v10
        v_lshrrev_b32 v11, 2, v8
        v_lshl_add_u32 v10, v11, 3, v10    ; d
        v_mul_u32_u24 v9, 20, v9
        v_add_u32 v9, v9, v10
        s_branch {Lo}_c{q}
{Lo}_a{q}:
        s_lshl_b32 s15, s{SSTEP}, 5
        v_add_u32 v9, s15, v3
{Lo}_c{q}:
        v_mul_u32_u24 v9, 1280, v9
        v_lshl_add_u32 v9, v4, 4, v9
        s_lshl_b32 s14, s14, 4
        s_mov_b32 m0, s14
        s_nop 0
        buffer_load_dwordx4 v9, s[20:23], 0 offen lds
        """)
    a(f"""
    s_waitcnt vmcnt(0)
    s_barrier
    v_lshrrev_b32 v2, 4, v1                ; g
    v_and_b32 v3, 15, v1                   ; i
    v_lshrrev_b32 v4, 2, v3
    v_lshl_add_u32 v4, v2, 3, v4           ; j
    v_and_b32 v5, 3, v4
    v_and_b32 v6, 1, v2
    v_lshl_or_b32 v5, v6, 2, v5            ; h(j)
    v_lshlrev_b32 v5, 5, v5                ; 2h * 16 bytes
    v_mul_u32_u24 v4, 1280, v4
    v_and_b32 v6, 3, v3                    ; c4
    v_lshlrev_b32 v6, 3, v6
    s_mul_i32 s14, s{S_W}, 160
    """)
    for ct in range(5):
        a(f"""
        s_add_u32 s15, s14, {32*ct}
        v_add_u32 v7, s15, v6
        v_xor_b32 v7, v7, v5
        v_add_u32 v7, v7, v4
        ds_read_b64_tr_b16 v[{16+4*ct}:{17+4*ct}], v7
        ds_read_b64_tr_b16 v[{18+4*ct}:{19+4*ct}], v7 offset:5120
        """)
    a(f"""
    s_mul_i32 s14, s{S_W}, 68
    s_add_u32 s14, s14, s{SSTEP}
    s_mul_i32 s14, s14, 5120
    s_add_u32 s14, s14, {OFF_W3}
    v_lshlrev_b32 v8, 4, v1
    s_waitcnt lgkmcnt(0)
    """)
    for ct in range(5):
        if ct == 4: a("s_add_u32 s14, s14, 4096")
        a(f"buffer_store_dwordx4 v[{16+4*ct}:{19+4*ct}], v8, s[{SRD_WS}:{SRD_WS+3}], s14 offen offset:{1024*(ct%4)} {st}")
    a("s_barrier")

def side_all(a, SID, st=""):
    side_stats(a, SID, st)
    side_cs(a, SID, st)
    a(f"s_mov_b32 s30, s{SID}")
    side_w3_step(a, 30, st)
    L = a.label("w3_2")
    a(f"""
    s_add_u32 s30, s{SID}, 40
    s_cmp_ge_u32 s30, 68
    s_cbranch_scc1 {L}
    """)
    side_w3_step(a, 30, st)
    a(f"{L}:")
```

```python
import sys
sys.path.insert(0, "gen")
from common import *
from side import *
import p1, p2, p3

NAME = "parallel_sum__sliding_block__mixer_channel_mlp__prompt"
def build():
    hdr = open("cdna_kernels/%s.s.ref" % NAME).read().split("; Override")[0]
    out = hdr
    out += "; @launch kernel=k0_kernel grid=(40,1,1) block=(512,1,1) lds=49152\n"
    out += f"; @launch kernel=k1_kernel grid=(256,1,1) block=(512,1,1) lds={p1.P1_LDS}\n"
    out += f"; @launch kernel=k2_kernel grid=(256,1,1) block=(512,1,1) lds={p2.P2_LDS}\n"
    out += f"; @launch kernel=k3_kernel grid=(256,1,1) block=(512,1,1) lds={p3.P3_LDS}\n"
    out += '.amdgcn_target "amdgcn-amd-amdhsa--gfx950"\n.text\n'
    a = Asm()
    a("s_cmp_ge_u32 s2, 40"); a("s_cbranch_scc1 Lk0_end")
    prologue(a); a("s_mov_b32 s12, s2"); side_all(a, 12); a("Lk0_end:"); a("s_endpgm")
    out += header("k0_kernel") + a.text()
    a = Asm(); a.n = 1000
    a("s_cmp_ge_u32 s2, 256"); a("s_cbranch_scc1 Lk1_end")
    prologue(a); p1.p1_body(a, "Lk1_end"); a("Lk1_end:"); a("s_endpgm")
    out += header("k1_kernel") + a.text()
    a = Asm(); a.n = 2000
    a("s_cmp_ge_u32 s2, 256"); a("s_cbranch_scc1 Lk2_end")
    prologue(a); p2.p2_body(a); a("Lk2_end:"); a("s_endpgm")
    out += header("k2_kernel") + a.text()
    a = Asm(); a.n = 3000
    a("s_cmp_ge_u32 s2, 256"); a("s_cbranch_scc1 Lk3_end")
    prologue(a); p3.p3_body(a); a("Lk3_end:"); a("s_endpgm")
    out += header("k3_kernel") + a.text()
    out += '.section .rodata,"a"\n'
    for k in ("k0_kernel", "k1_kernel", "k2_kernel", "k3_kernel"):
        out += desc(k)
    return out
if __name__ == "__main__":
    s = build()
    open(sys.argv[1] if len(sys.argv) > 1 else "multi.s", "w").write(s)
    print(len(s))
```

```python
import math, re
S=2048; D=640; F=1536; H=32; DH=20
OFF_STATS = 0x0
OFF_CS    = 0x8000
OFF_QK    = 0x10000
OFF_V     = 0x510000
OFF_H     = 0x790000
OFF_O     = 0xD90000
OFF_O4    = 0xF90000
OFF_W3    = 0x1010000
OFF_FLAGS = 0x1300000
WS_USED   = 0x1400000
XB = S*D*2
WQKVB = D*3*D*2
WOB = D*D*2
W1B = D*F*2
W2B = F*D*2
B1B = F*2
B2B = D*2
OUTB = S*D*2
LOG2E = 1.4426950408889634
QSCALE = LOG2E / math.sqrt(DH)
GC1 = -2.0*math.sqrt(2.0/math.pi)*LOG2E
GC2 = GC1*0.044715
EPS = 1e-5

import struct
def f2u(x):
    return struct.unpack("<I", struct.pack("<f", x))[0]
def fhex(x):
    return "0x%08x" % f2u(x)

class Asm:
    def __init__(self):
        self.lines = []
        self.n = 0
    def __call__(self, s=""):
        for l in s.strip("\n").split("\n"):
            l = l.strip()
            if l == "": continue
            if l.startswith("buffer_"):
                m = re.search(r"offset:(\d+)", l)
                if m and int(m.group(1)) > 4095: raise ValueError("MUBUF offset too large: " + l)
            if l.startswith("ds_"):
                m = re.search(r"offset:(-?\d+)", l)
                if m and not (0 <= int(m.group(1)) <= 65535): raise ValueError("DS offset out of range: " + l)
            if l.endswith(":") and not l.startswith(";"):
                self.lines.append(l)
            else:
                self.lines.append("    " + l)
    def label(self, p="L"):
        self.n += 1
        return f"{p}_{self.n}"
    def text(self):
        return "\n".join(self.lines) + "\n"

def vr(b, n=1):
    return f"v{b}" if n == 1 else f"v[{b}:{b+n-1}]"
def sr(b, n=1):
    return f"s{b}" if n == 1 else f"s[{b}:{b+n-1}]"

def srd(a, dst, lo, hi, size):
    a(f"s_mov_b32 s{dst}, s{lo}")
    a(f"s_and_b32 s{dst+1}, s{hi}, 0xffff")
    a(f"s_mov_b32 s{dst+2}, {size}")
    a(f"s_mov_b32 s{dst+3}, 0x20000")

def header(name):
    return f".globl {name}\n.p2align 8\n.type {name},@function\n{name}:\n"
def desc(name, vgpr=256, sgpr=102):
    acc = min(256, (vgpr + 3)//4*4)
    return f""".p2align 6
.amdhsa_kernel {name}
  .amdhsa_next_free_vgpr {vgpr}
  .amdhsa_next_free_sgpr {sgpr}
  .amdhsa_accum_offset {acc}
  .amdhsa_group_segment_fixed_size 0
  .amdhsa_kernarg_size 88
  .amdhsa_user_sgpr_count 2
  .amdhsa_user_sgpr_kernarg_segment_ptr 1
  .amdhsa_system_sgpr_workgroup_id_x 1
  .amdhsa_float_denorm_mode_32 3
  .amdhsa_float_denorm_mode_16_64 3
.end_amdhsa_kernel
"""

OFF_STAMPS = 0x1380000
STAMP = False
def stamp(a, i):
    import common
    if common.STAMP:
        assert i < 7
        a(f"s_memtime s[{88+2*i}:{89+2*i}]")
def stamp_dump(a, kidx=0):
    import common
    if common.STAMP:
        a("s_waitcnt lgkmcnt(0)")
        a(f"s_lshl_b32 s40, s2, 3")
        a(f"s_add_u32 s40, s40, s3")
        a(f"s_lshl_b32 s40, s40, 5")
        a(f"s_add_u32 s40, s40, {OFF_STAMPS + kidx*65536}")
        a("v_mov_b32 v2, 0")
        for i in range(7):
            a(f"v_mov_b32 v3, s{88+2*i}")
            a(f"buffer_store_dword v3, v2, s[4:7], s40 offen offset:{4*i}")
```

```python
from common import *
from side import *

LA = [0, 32768, 65536]
LW = [98304, 114688, 131072]
L_CS = 147456
L_B1 = L_CS + 512
L_M  = L_B1 + 256
L_R  = L_M + 1024
P1_LDS = L_R + 1024

ACC = 64
XF = 128
WF = 144
XADDR = 160
WADDR = 168
VA = 169
VB0 = 170; VB1 = 171
S_RB=12; S_PAIR=13; S_T0=14; S_PA=15; S_PB=16; S_TYPEA=17; S_ISH=18
SRD_W=20
S_SA=24
S_SB=28
S_WSTEP=29
S_MA=30
S_MB=31

def p1_decode(a, Lside):
    a(f"""
    s_and_b32 s40, s{S_WG}, 7              ; xcd j
    s_lshr_b32 s41, s{S_WG}, 3             ; idx
    s_and_b32 s42, s40, 1                  ; RG
    s_lshr_b32 s43, s40, 1                 ; CG
    s_cmp_lt_u32 s43, 3
    s_cselect_b32 s44, 28, 24              ; ngemm
    s_cmp_lt_u32 s41, s44
    s_cbranch_scc1 Lp1_gemm
    s_sub_u32 s45, s41, s44
    s_cmp_lt_u32 s40, 6
    s_cbranch_scc0 Lp1_side2
    s_lshl_b32 s12, s40, 2
    s_add_u32 s12, s12, s45
    s_branch {Lside}
Lp1_side2:
    s_sub_u32 s12, s40, 6
    s_lshl_b32 s12, s12, 3
    s_add_u32 s12, s12, 24
    s_add_u32 s12, s12, s45
    s_branch {Lside}
Lp1_gemm:
    s_and_b32 s45, s41, 3
    s_lshl_b32 s{S_RB}, s42, 2
    s_add_u32 s{S_RB}, s{S_RB}, s45        ; rb
    s_lshr_b32 s45, s41, 2
    s_mul_i32 s{S_PAIR}, s43, 7
    s_add_u32 s{S_PAIR}, s{S_PAIR}, s45    ; pair
    s_lshl_b32 s{S_T0}, s{S_RB}, 8
    ; pieces
    s_cmp_lt_u32 s{S_PAIR}, 10
    s_cbranch_scc0 Lp1_d1
    s_add_u32 s{S_PA}, s{S_PAIR}, 20       ; V piece (20..29)
    s_mov_b32 s{S_PB}, s{S_PAIR}
    s_mov_b32 s{S_TYPEA}, 2
    s_mov_b32 s{S_ISH}, 1
    s_branch Lp1_d3
Lp1_d1:
    s_cmp_lt_u32 s{S_PAIR}, 24
    s_cbranch_scc0 Lp1_d2
    s_sub_u32 s{S_PA}, s{S_PAIR}, 10
    s_mov_b32 s{S_PB}, s{S_PAIR}
    s_cmp_ge_u32 s{S_PA}, 10
    s_cselect_b32 s{S_TYPEA}, 1, 0
    s_mov_b32 s{S_ISH}, 1
    s_branch Lp1_d3
Lp1_d2:
    s_sub_u32 s{S_PA}, s{S_PAIR}, 24
    s_lshl_b32 s{S_PA}, s{S_PA}, 1
    s_add_u32 s{S_PA}, s{S_PA}, 14         ; 14,16,18
    s_add_u32 s{S_PB}, s{S_PA}, 1
    s_mov_b32 s{S_TYPEA}, 1
    s_mov_b32 s{S_ISH}, 0
Lp1_d3:
    """)

def p1_setup(a):
    a(f"""
    s_lshr_b32 s40, s{S_W}, 2              ; p
    s_and_b32 s41, s{S_W}, 3
    s_and_b32 s42, s40, s{S_ISH}           ; 1 -> w1
    s_cmp_eq_u32 s40, 0
    s_cselect_b32 s43, s{S_PA}, s{S_PB}
    s_lshl_b32 s43, s43, 7                 ; *128 bytes
    s_cmp_eq_u32 s42, 1
    s_cselect_b32 s{SRD_W}, s{P_W1}, s{P_WQKV}
    s_cselect_b32 s{SRD_W+1}, s{P_W1+1}, s{P_WQKV+1}
    s_mov_b32 s{SRD_W+2}, {WQKVB}
    s_cselect_b32 s{SRD_W+2}, {W1B}, s{SRD_W+2}
    s_movk_i32 s44, 3840
    s_cselect_b32 s44, 3072, s44           ; stride
    s_and_b32 s{SRD_W+1}, s{SRD_W+1}, 0xffff
    s_mov_b32 s{SRD_W+3}, 0x20000
    s_lshl_b32 s{S_WSTEP}, s44, 6          ; 64 rows
    s_mov_b32 s{S_SB}, s43
    v_lshrrev_b32 v2, 3, v1
    v_and_b32 v3, 7, v1
    v_lshrrev_b32 v4, 1, v2
    v_and_b32 v4, 1, v4
    v_lshlrev_b32 v4, 2, v4
    v_xor_b32 v3, v3, v4
    s_lshl_b32 s45, s41, 4
    v_add_u32 v2, s45, v2
    v_mul_lo_u32 v2, v2, s44
    v_lshl_add_u32 v{VB0}, v3, 4, v2
    s_lshl_b32 s45, s44, 3
    v_add_u32 v{VB1}, s45, v{VB0}
    s_lshl_b32 s{S_MB}, s40, 13
    s_lshl_b32 s45, s41, 11
    s_add_u32 s{S_MB}, s{S_MB}, s45        ; p*8192 + (w&3)*2048
    v_lshrrev_b32 v2, 3, v1
    v_and_b32 v3, 7, v1
    v_lshrrev_b32 v4, 4, v1
    s_and_b32 s45, s{S_W}, 1
    s_lshl_b32 s45, s45, 2
    v_or_b32 v4, s45, v4
    v_xor_b32 v3, v3, v4
    s_lshl_b32 s45, s{S_W}, 3
    s_add_u32 s45, s45, s{S_T0}
    v_add_u32 v2, s45, v2
    v_mul_u32_u24 v2, 1280, v2
    v_lshl_add_u32 v{VA}, v3, 4, v2
    s_mov_b32 s{S_SA}, 0
    s_mov_b32 s{S_SA+1}, 81920
    s_mov_b32 s{S_SA+2}, 163840
    s_mov_b32 s{S_SA+3}, 245760
    s_lshl_b32 s{S_MA}, s{S_W}, 10
    v_and_b32 v2, 31, v1
    s_lshl_b32 s45, s41, 6
    v_add_u32 v2, s45, v2                  ; row
    v_lshrrev_b32 v3, 1, v2
    v_and_b32 v3, 7, v3
    v_lshrrev_b32 v4, 5, v1                ; hf
    v_xor_b32 v3, v3, v4
    v_lshlrev_b32 v3, 4, v3
    v_lshl_add_u32 v{XADDR}, v2, 7, v3
    v_xor_b32 v{XADDR+1}, 32, v{XADDR}
    v_xor_b32 v{XADDR+2}, 64, v{XADDR}
    v_xor_b32 v{XADDR+3}, 96, v{XADDR}
    v_add_u32 v{XADDR+4}, 65536, v{XADDR}
    v_add_u32 v{XADDR+5}, 65536, v{XADDR+1}
    v_add_u32 v{XADDR+6}, 65536, v{XADDR+2}
    v_add_u32 v{XADDR+7}, 65536, v{XADDR+3}
    v_and_b32 v2, 15, v1
    v_lshrrev_b32 v3, 4, v1
    v_lshrrev_b32 v4, 1, v3
    v_lshlrev_b32 v4, 3, v4
    v_lshrrev_b32 v5, 2, v2
    v_add_u32 v4, v4, v5                   ; row
    v_and_b32 v5, 3, v2                    ; c
    v_and_b32 v6, 1, v5
    v_lshrrev_b32 v5, 1, v5
    v_lshl_or_b32 v5, v6, 1, v5            ; swap(c) = ((c&1)<<1)|(c>>1)
    v_and_b32 v3, 1, v3
    v_lshl_add_u32 v5, v3, 2, v5
    s_lshl_b32 s45, s40, 3                 ; nh = w>>2
    v_add_u32 v5, s45, v5                  ; quad
    v_lshlrev_b32 v5, 3, v5
    v_lshrrev_b32 v6, 3, v2
    v_lshlrev_b32 v6, 6, v6
    v_xor_b32 v5, v5, v6
    v_lshl_add_u32 v5, v4, 7, v5
    v_add_u32 v{WADDR}, {LW[0]}, v5
    """)

def p1_dma(a, c):
    st = c % 3
    for q in range(4):
        a(f"s_add_u32 m0, s{S_MA}, {LA[st] + q*8192}")
        a(f"s_nop 0")
        a(f"buffer_load_dwordx4 v{VA}, s[{SRD_X}:{SRD_X+3}], s{S_SA+q} offen lds")
    a(f"s_add_u32 m0, s{S_MB}, {LW[st]}")
    a(f"s_nop 0")
    a(f"buffer_load_dwordx4 v{VB0}, s[{SRD_W}:{SRD_W+3}], s{S_SB} offen lds")
    a(f"s_add_u32 m0, s{S_MB}, {LW[st] + 1024}")
    a(f"s_nop 0")
    a(f"buffer_load_dwordx4 v{VB1}, s[{SRD_W}:{SRD_W+3}], s{S_SB} offen lds")
    for q in range(4):
        a(f"s_add_u32 s{S_SA+q}, s{S_SA+q}, 128")
    a(f"s_add_u32 s{S_SB}, s{S_SB}, s{S_WSTEP}")

def p1_reads(a, c, s, buf):
    st = c % 3
    xa = XADDR + s + (4 if st == 2 else 0)
    xo = LA[st] - (65536 if st == 2 else 0)
    for i in range(2):
        a(f"ds_read_b128 v[{XF+8*buf+4*i}:{XF+8*buf+4*i+3}], v{xa} offset:{xo + i*4096}")
    for p in range(2):
        wo = (LW[st] - LW[0]) + p*8192 + s*2048
        a(f"ds_read_b64_tr_b16 v[{WF+8*buf+4*p}:{WF+8*buf+4*p+1}], v{WADDR} offset:{wo}")
        a(f"ds_read_b64_tr_b16 v[{WF+8*buf+4*p+2}:{WF+8*buf+4*p+3}], v{WADDR} offset:{wo + 512}")

def p1_mfma(a, buf, vform, first):
    for i in range(2):
        for p in range(2):
            acc = ACC + 32*i + 16*p
            x = f"v[{XF+8*buf+4*i}:{XF+8*buf+4*i+3}]"
            w = f"v[{WF+8*buf+4*p}:{WF+8*buf+4*p+3}]"
            c = "0" if first else f"v[{acc}:{acc+15}]"
            if vform and p == 0:
                a(f"v_mfma_f32_32x32x16_bf16 v[{acc}:{acc+15}], {x}, {w}, {c}")
            else:
                a(f"v_mfma_f32_32x32x16_bf16 v[{acc}:{acc+15}], {w}, {x}, {c}")

def p1_mainloop(a, vform):
    NC = 10
    a("s_waitcnt vmcnt(12)")
    a("s_barrier")
    stamp(a, 2)
    p1_reads(a, 0, 0, 0)
    buf = 0
    for c in range(NC):
        for s in range(4):
            if s < 3:
                p1_reads(a, c, s+1, buf ^ 1)
                a("s_waitcnt lgkmcnt(6)")
                p1_mfma(a, buf, vform, c == 0 and s == 0)
            else:
                a("s_waitcnt lgkmcnt(0)")
                if c + 1 < NC:
                    rem = 6 if c + 2 < NC else 0
                    a(f"s_waitcnt vmcnt({rem})")
                    a("s_barrier")
                    if c + 3 < NC:
                        p1_dma(a, c + 3)
                    p1_reads(a, c + 1, 0, buf ^ 1)
                p1_mfma(a, buf, vform, False)
            buf ^= 1

def p1_load_consts(a, ld=""):
    a(f"""
    s_lshl_b32 s40, s{S_PA}, 6
    s_lshl_b32 s41, s{S_PB}, 6
    s_cmp_eq_u32 s{S_ISH}, 1
    s_cselect_b32 s42, 1920, 0
    s_add_u32 s41, s41, s42
    s_sub_u32 s41, s41, 64                 ; so that col = s41 + tid for tid in 64..127
    v_cmp_gt_u32 vcc, 64, v0
    v_mov_b32 v2, s41
    v_mov_b32 v3, s40
    v_cndmask_b32 v2, v2, v3, vcc
    v_add_u32 v2, v2, v0
    v_lshlrev_b32 v2, 2, v2
    s_mov_b32 s42, {OFF_CS}
    v_cmp_gt_u32 vcc, 128, v0
    s_and_saveexec_b64 s[44:45], vcc
    s_cbranch_execz Lp1_c1
    buffer_load_dword v4, v2, s[{SRD_WS}:{SRD_WS+3}], s42 offen {ld}
    v_lshlrev_b32 v5, 2, v0
    s_waitcnt vmcnt(0)
    ds_write_b32 v5, v4 offset:0
Lp1_c1:
    s_mov_b64 exec, s[44:45]
    """.replace("ds_write_b32 v5, v4 offset:0", f"v_add_u32 v5, {L_CS}, v5\n ds_write_b32 v5, v4"))
    srd(a, 48, P_B1, P_B1+1, B1B)
    a(f"""
    s_lshl_b32 s40, s{S_PB}, 7
    v_subrev_u32 v2, 128, v0
    v_cmp_gt_u32 vcc, 64, v2
    s_and_saveexec_b64 s[44:45], vcc
    s_cbranch_execz Lp1_c2
    v_lshlrev_b32 v3, 1, v2
    buffer_load_ushort v4, v3, s[48:51], s40 offen
    v_lshlrev_b32 v5, 2, v2
    v_add_u32 v5, {L_B1}, v5
    s_waitcnt vmcnt(0)
    v_lshlrev_b32 v4, 16, v4
    ds_write_b32 v5, v4
Lp1_c2:
    s_mov_b64 exec, s[44:45]
    v_subrev_u32 v2, 256, v0
    v_cmp_gt_u32 vcc, 256, v2
    s_and_saveexec_b64 s[44:45], vcc
    s_cbranch_execz Lp1_c3
    v_add_u32 v3, s{S_T0}, v2
    v_lshlrev_b32 v3, 4, v3
    buffer_load_dwordx2 v[4:5], v3, s[{SRD_WS}:{SRD_WS+3}], 0 offen offset:{OFF_STATS} {ld}
    v_lshlrev_b32 v6, 2, v2
    v_add_u32 v6, {L_M}, v6
    s_waitcnt vmcnt(0)
    ds_write_b32 v6, v4
    ds_write_b32 v6, v5 offset:1024
Lp1_c3:
    s_mov_b64 exec, s[44:45]
    s_and_b32 s40, s{S_W}, 3
    s_lshl_b32 s40, s40, 6
    s_add_u32 s40, s40, s{S_T0}
    v_and_b32 v2, 31, v1
    v_add_u32 v2, s40, v2
    v_lshlrev_b32 v2, 4, v2
    buffer_load_dwordx4 v[172:175], v2, s[{SRD_WS}:{SRD_WS+3}], 0 offen offset:{OFF_STATS} {ld}
    buffer_load_dwordx4 v[176:179], v2, s[{SRD_WS}:{SRD_WS+3}], 0 offen offset:{OFF_STATS+512} {ld}
    s_waitcnt vmcnt(0) lgkmcnt(0)
    s_barrier
    """)

def epi_T(a, p, gelu, st, defer=False):
    for i in range(2):
        b = 172 + 4*i
        if gelu:
            a(f"v_mov_b32 v{180+i}, v{b+2}")
        else:
            if p == 0:
                a(f"s_cmp_eq_u32 s{S_TYPEA}, 0")
                a(f"s_cselect_b64 vcc, -1, 0")
                a(f"v_cndmask_b32 v{180+i}, v{b+1}, v{b+3}, vcc")
            else:
                a(f"v_mov_b32 v{180+i}, v{b+1}")
        a(f"v_mul_f32 v{182+i}, v{180+i}, v{b}")
        a(f"v_sub_f32 v{182+i}, 0, v{182+i}")
    a(f"""
    s_lshr_b32 s40, s{S_W}, 2
    s_lshl_b32 s41, s40, 7
    v_lshrrev_b32 v2, 5, v1
    v_lshlrev_b32 v2, 5, v2
    v_add_u32 v2, s41, v2
    v_add_u32 v2, {L_CS}, v2
    """)
    a(f"""
    s_and_b32 s42, s{S_W}, 3
    s_lshl_b32 s42, s42, 6
    s_add_u32 s42, s42, s{S_T0}
    v_and_b32 v3, 31, v1
    v_add_u32 v3, s42, v3
    v_lshlrev_b32 v3, 4, v3
    v_lshrrev_b32 v4, 5, v1
    v_lshl_add_u32 v3, v4, 15, v3
    s_lshl_b32 s43, s{S_PA if p == 0 else S_PB}, 3
    s_lshl_b32 s44, s40, 2
    s_add_u32 s43, s43, s44
    s_lshl_b32 s43, s43, 15
    s_add_u32 s43, s43, {OFF_H if gelu else OFF_QK}
    """)
    if gelu:
        a(f"s_mov_b32 s46, {fhex(GC1)}")
        a(f"s_mov_b32 s47, {fhex(GC2)}")
    for j in range(2):
        a(f"ds_read_b128 v[184:187], v2 offset:{p*256 + j*64}")
        a(f"ds_read_b128 v[188:191], v2 offset:{p*256 + j*64 + 16}")
        if gelu:
            a(f"ds_read_b128 v[192:195], v2 offset:{L_B1 - L_CS + j*64}")
            a(f"ds_read_b128 v[196:199], v2 offset:{L_B1 - L_CS + j*64 + 16}")
        a("s_waitcnt lgkmcnt(0)")
        for i in range(2):
            acc = ACC + 32*i + 16*p + 8*j
            T = 200
            for e in range(8):
                if gelu:
                    a(f"v_fma_f32 v{T+e}, v{182+i}, v{184+e}, v{192+e}")
                else:
                    a(f"v_mul_f32 v{T+e}, v{182+i}, v{184+e}")
            for e in range(8):
                a(f"v_fma_f32 v{acc+e}, v{180+i}, v{acc+e}, v{T+e}")
            if gelu:
                for e in range(8):
                    a(f"v_mul_f32 v{T+e}, v{acc+e}, v{acc+e}")
                a(f"v_mov_b32 v{T+8}, s46")
                for e in range(8):
                    a(f"v_fma_f32 v{T+e}, v{T+e}, s47, v{T+8}")
                for e in range(8):
                    a(f"v_mul_f32 v{T+e}, v{T+e}, v{acc+e}")
                for e in range(8):
                    a(f"v_exp_f32 v{T+e}, v{T+e}")
                for e in range(8):
                    a(f"v_add_f32 v{T+e}, 1.0, v{T+e}")
                for e in range(8):
                    a(f"v_rcp_f32 v{T+e}, v{T+e}")
                for e in range(8):
                    a(f"v_mul_f32 v{acc+e}, v{acc+e}, v{T+e}")
            PK = (220 + 8*j + 4*i) if defer else (216 + 4*i)
            for e in range(4):
                a(f"v_cvt_pk_bf16_f32 v{PK+e}, v{acc+2*e}, v{acc+2*e+1}")
            if not defer:
                a(f"s_add_u32 s44, s43, {j*65536}")
                a(f"buffer_store_dwordx4 v[{PK}:{PK+3}], v3, s[{SRD_WS}:{SRD_WS+3}], s44 offen offset:{i*512} {st}")
    if defer:
        defer(a)
        for j in range(2):
            for i in range(2):
                PK = 220 + 8*j + 4*i
                a(f"s_add_u32 s44, s43, {j*65536}")
                a(f"buffer_store_dwordx4 v[{PK}:{PK+3}], v3, s[{SRD_WS}:{SRD_WS+3}], s44 offen offset:{i*512} {st}")

def epi_V(a, st):
    a(f"""
    v_and_b32 v2, 31, v1
    v_lshrrev_b32 v3, 2, v2
    v_and_b32 v3, 3, v3
    v_and_b32 v4, 1, v3
    v_lshrrev_b32 v3, 1, v3
    v_lshl_or_b32 v3, v4, 1, v3            ; swap
    v_lshlrev_b32 v3, 2, v3
    v_and_b32 v4, 3, v2
    v_add_u32 v3, v3, v4
    v_and_b32 v4, 16, v2
    v_add_u32 v3, v3, v4                   ; nsrc
    s_lshr_b32 s40, s{S_W}, 2
    s_lshl_b32 s41, s40, 5
    v_add_u32 v3, s41, v3
    v_lshlrev_b32 v4, 2, v3
    v_add_u32 v4, {L_CS}, v4
    ds_read_b32 v184, v4
    s_sub_u32 s42, s{S_PA}, 20
    s_lshl_b32 s42, s42, 6
    v_add_u32 v3, s42, v3
    v_lshlrev_b32 v3, 5, v3
    v_lshrrev_b32 v4, 5, v1
    v_lshl_add_u32 v3, v4, 4, v3           ; voffset
    s_and_b32 s42, s{S_W}, 3
    s_lshl_b32 s42, s42, 6
    s_add_u32 s43, s42, s{S_T0}
    s_lshr_b32 s43, s43, 4
    s_mul_i32 s43, s43, 20480
    s_add_u32 s43, s43, {OFF_V}
    v_lshlrev_b32 v4, 4, v4
    s_lshl_b32 s42, s42, 2
    v_add_u32 v4, s42, v4
    v_add_u32 v4, {L_M}, v4
    s_waitcnt lgkmcnt(0)
    v_sub_f32 v184, 0, v184                ; -cs
    """)
    for i in range(2):
        for j in range(2):
            o = (32*i + 16*j)*4
            a(f"ds_read_b128 v[188:191], v4 offset:{o}")
            a(f"ds_read_b128 v[192:195], v4 offset:{o + 32}")
            a(f"ds_read_b128 v[196:199], v4 offset:{L_R - L_M + o}")
            a(f"ds_read_b128 v[200:203], v4 offset:{L_R - L_M + o + 32}")
            a("s_waitcnt lgkmcnt(0)")
            acc = ACC + 32*i + 8*j
            for e in range(8):
                a(f"v_fma_f32 v{acc+e}, v{188+e}, v184, v{acc+e}")
            for e in range(8):
                a(f"v_mul_f32 v{acc+e}, v{acc+e}, v{196+e}")
            PK = 216 + 4*(j)
            for e in range(4):
                a(f"v_cvt_pk_bf16_f32 v{PK+e}, v{acc+2*e}, v{acc+2*e+1}")
            a(f"s_add_u32 s44, s43, {(2*i+j)*20480}")
            a(f"buffer_store_dwordx4 v[{PK}:{PK+3}], v3, s[{SRD_WS}:{SRD_WS+3}], s44 offen {st}")

def p1_body(a, Lside, st="", ld="", presync=None, sigq=None):
    p1_decode(a, Lside)
    p1_setup(a)
    stamp(a, 1)
    for c in range(3):
        p1_dma(a, c)
    a(f"""
    s_cmp_eq_u32 s{S_TYPEA}, 2
    s_cbranch_scc1 Lp1_vform
    """)
    p1_mainloop(a, False)
    a("s_branch Lp1_epi")
    a("Lp1_vform:")
    p1_mainloop(a, True)
    a("Lp1_epi:")
    stamp(a, 3)
    if presync: presync(a)
    p1_load_consts(a, ld)
    stamp(a, 4)
    a("s_nop 7")
    a(f"""
    s_cmp_eq_u32 s{S_TYPEA}, 2
    s_cbranch_scc1 Lp1_epiV
    """)
    epi_T(a, 0, False, st)
    a("s_branch Lp1_epiB")
    a("Lp1_epiV:")
    epi_V(a, st)
    a("Lp1_epiB:")
    stamp(a, 5)
    a(f"""
    s_cmp_eq_u32 s{S_ISH}, 1
    s_cbranch_scc1 Lp1_epiH
    """)
    epi_T(a, 1, False, st)
    if sigq: sigq(a)
    a("s_branch Lp1_done")
    a("Lp1_epiH:")
    epi_T(a, 1, True, st, defer=sigq if sigq else False)
    a("Lp1_done:")
    stamp(a, 6)
```

```python
from common import *
from side import *

LK = 0
LV = 24576
P2_LDS = LV + 32*672 + 512
S_H=12; S_QB=13; S_ODD=14; S_KB0=15
SC = 64
OA = 208
QF1 = 224; QF2 = 228
KF = 232
KADDR = 248; KADDR3 = 249; VADDR = 250
MX = 251; TMP = 252; TMP2 = 253
PM = 16
PF = 24

def p2_decode(a):
    a(f"""
    s_and_b32 s40, s{S_WG}, 7
    s_lshr_b32 s41, s{S_WG}, 3
    s_and_b32 s42, s41, 3
    s_lshl_b32 s{S_H}, s40, 2
    s_add_u32 s{S_H}, s{S_H}, s42          ; head
    s_lshr_b32 s{S_QB}, s41, 2             ; qb
    s_and_b32 s{S_ODD}, s{S_H}, 1
    """)

def p2_loads(a, ld=""):
    a(f"""
    s_lshr_b32 s40, s{S_H}, 1
    s_mul_i32 s40, s40, 5
    s_mul_i32 s41, s{S_ODD}, 3
    s_add_u32 s41, s41, s40                ; o1
    s_add_u32 s42, s41, 1                  ; o2
    s_add_u32 s43, s40, 2                  ; o3
    s_lshl_b32 s44, s{S_QB}, 8             ; Tq0
    s_lshl_b32 s45, s{S_W}, 5
    s_add_u32 s45, s45, s44
    v_and_b32 v2, 31, v1
    v_add_u32 v2, s45, v2
    v_lshlrev_b32 v2, 4, v2                ; token*16
    v_lshrrev_b32 v3, 5, v1                ; hf
    v_lshl_add_u32 v4, v3, 15, v2          ; + hf*32768 (o2 = o1+1)
    s_lshl_b32 s46, s41, 15
    s_add_u32 s46, s46, {OFF_QK}
    buffer_load_dwordx4 v[{QF1}:{QF1+3}], v4, s[{SRD_WS}:{SRD_WS+3}], s46 offen {ld}
    s_lshl_b32 s46, s43, 15
    s_add_u32 s46, s46, {OFF_QK}
    buffer_load_dwordx4 v[{QF2}:{QF2+3}], v2, s[{SRD_WS}:{SRD_WS+3}], s46 offen {ld}
    ; ---- K DMAs: 24 instrs: n = 3w + q : oct = n / 8, seg = n % 8 (64 tokens each) -> use n = w + 8q: oct = q, seg = w
    s_sub_u32 s47, s44, 256
    s_lshl_b32 s48, s{S_W}, 6
    s_add_u32 s47, s47, s48
    s_lshl_b32 s47, s47, 4                 ; *16 bytes
    v_lshlrev_b32 v5, 4, v1
    s_lshl_b32 s49, s{S_W}, 10             ; seg*1024
    s_cmp_eq_u32 s{S_QB}, 0
    s_cselect_b32 s50, 1, 0
    s_cmp_lt_u32 s{S_W}, 4
    s_cselect_b32 s51, 1, 0
    s_and_b32 s50, s50, s51
    s_cmp_eq_u32 s50, 1
    s_cbranch_scc1 Lp2_skipK
    """)
    for q, so in enumerate((41, 42, 43)):
        a(f"""
        s_add_u32 s46, s{so}, 80
        s_lshl_b32 s46, s46, 15
        s_add_u32 s46, s46, {OFF_QK}
        s_add_u32 s46, s46, s47
        s_add_u32 m0, s49, {LK + q*8192}
        s_nop 0
        buffer_load_dwordx4 v5, s[{SRD_WS}:{SRD_WS+3}], s46 offen {ld} lds
        """)
    a(f"""
Lp2_skipK:
    v_cmp_lt_u32 vcc, 20, v1
    v_subrev_u32 v6, 21, v1
    v_cndmask_b32 v6, v1, v6, vcc          ; d
    v_cndmask_b32 v7, 0, 1, vcc            ; hf
    v_lshlrev_b32 v6, 5, v6
    v_lshl_add_u32 v6, v7, 4, v6           ; d*32 + hf*16
    s_mul_i32 s46, s{S_H}, 640
    v_add_u32 v6, s46, v6
    s_lshr_b32 s47, s44, 4
    s_sub_u32 s47, s47, 16
    s_add_u32 s47, s47, s{S_W}
    s_mul_i32 s47, s47, 20480
    s_add_u32 s47, s47, {OFF_V}
    s_mul_i32 s48, s{S_W}, 672
    s_mov_b32 s50, 0xffefffff
    s_mov_b32 s51, 0x000001ff
    v_mov_b32 v8, 0x3f803f80
    v_mov_b32 v9, 0x3f803f80
    v_mov_b32 v10, 0x3f803f80
    v_mov_b32 v11, 0x3f803f80
    v_lshlrev_b32 v12, 4, v1
    v_add_u32 v12, s48, v12
    s_mov_b32 s52, 0x00100000
    s_mov_b32 s53, 0x00000200
    s_mov_b64 exec, s[52:53]
    """)
    for q in range(4):
        a(f"ds_write_b128 v12, v[8:11] offset:{LV + q*8*672}")
    a("s_mov_b64 exec, s[50:51]")
    for q in range(4):
        if q < 2:
            a(f"s_cmp_eq_u32 s{S_QB}, 0")
            a(f"s_cbranch_scc1 Lp2_skipV{q}")
        a(f"""
        s_add_u32 m0, s48, {LV + q*8*672}
        s_add_u32 s46, s47, {q*8*20480}
        buffer_load_dwordx4 v6, s[{SRD_WS}:{SRD_WS+3}], s46 offen {ld} lds
        """)
        if q < 2:
            a(f"Lp2_skipV{q}:")
    a("s_mov_b64 exec, -1")

def p2_setup(a):
    a(f"""
    v_and_b32 v2, 31, v1
    v_lshrrev_b32 v3, 5, v1
    v_lshlrev_b32 v3, 2, v3
    v_sub_u32 v2, v2, v3
    """)
    for r in range(16):
        jj = 8*(r >> 2) + (r & 3)
        a(f"v_cmp_le_i32 s[{20+2*r}:{21+2*r}], {jj}, v2")
    a("v_mov_b32 v4, 0xffff")
    a("v_mov_b32 v5, 0xffff0000")
    for k in range(8):
        a(f"v_cndmask_b32 v6, 0, v4, s[{20+4*k}:{21+4*k}]")
        a(f"v_cndmask_b32 v7, 0, v5, s[{22+4*k}:{23+4*k}]")
        a(f"v_or_b32 v{PM+k}, v6, v7")
    a(f"""
    v_and_b32 v2, 31, v1
    v_lshrrev_b32 v3, 5, v1
    s_lshl_b32 s54, s{S_W}, 9              ; 32w tokens *16B
    v_lshlrev_b32 v4, 4, v2
    v_add_u32 v4, s54, v4
    v_add_u32 v{KADDR3}, {LK + 16384}, v4
    v_lshl_add_u32 v{KADDR}, v3, 13, v4    ; + hf*8192
    s_mul_i32 s54, s{S_W}, 1344            ; 2w blocks * 672
    v_mul_u32_u24 v4, 336, v3
    v_lshl_add_u32 v4, v2, 4, v4
    v_add_u32 v4, s54, v4
    v_add_u32 v{VADDR}, {LV}, v4
    """)

def p2_qfix(a):
    a(f"""
    s_cmp_eq_u32 s{S_ODD}, 0
    s_cbranch_scc1 Lp2_qeven
    v_mov_b32 v{QF2}, 0
    v_mov_b32 v{QF2+1}, 0
    s_branch Lp2_qdone
Lp2_qeven:
    v_mov_b32 v{QF2+2}, 0
    v_mov_b32 v{QF2+3}, 0
Lp2_qdone:
    s_mov_b32 s54, 0
    s_mov_b32 s55, -1
    s_mov_b64 exec, s[54:55]
    v_mov_b32 v{QF2}, 0
    v_mov_b32 v{QF2+1}, 0
    v_mov_b32 v{QF2+2}, 0
    v_mov_b32 v{QF2+3}, 0
    s_mov_b64 exec, -1
    """)

def p2_compute(a, st=""):
    NEG = fhex(-1e30)
    a(f"""
    s_lshl_b32 s{S_KB0}, s{S_QB}, 3
    s_add_u32 s{S_KB0}, s{S_KB0}, s{S_W}
    s_sub_u32 s{S_KB0}, s{S_KB0}, 8
    """)
    def kread(t, b):
        a(f"ds_read_b128 v[{KF+8*b}:{KF+8*b+3}], v{KADDR} offset:{t*512}")
        a(f"ds_read_b128 v[{KF+8*b+4}:{KF+8*b+7}], v{KADDR3} offset:{t*512}")
    kread(0, 0)
    for t in range(9):
        b = t & 1
        if t + 1 < 9:
            kread(t + 1, b ^ 1)
            a("s_waitcnt lgkmcnt(2)")
        else:
            a("s_waitcnt lgkmcnt(0)")
        sc = SC + 16*t
        L = a.label("qk")
        if t < 8:
            a(f"s_cmp_lt_i32 s{S_KB0}, {-t}")
            a(f"s_cbranch_scc1 {L}_inv")
        a(f"v_mfma_f32_32x32x16_bf16 v[{sc}:{sc+15}], v[{KF+8*b}:{KF+8*b+3}], v[{QF1}:{QF1+3}], 0")
        a(f"v_mfma_f32_32x32x16_bf16 v[{sc}:{sc+15}], v[{KF+8*b+4}:{KF+8*b+7}], v[{QF2}:{QF2+3}], v[{sc}:{sc+15}]")
        if t < 8:
            a(f"s_branch {L}_ok")
            a(f"{L}_inv:")
            for r in range(16):
                a(f"v_mov_b32 v{sc+r}, {NEG}")
            a(f"{L}_ok:")
    a("s_nop 7")
    a("s_nop 7")
    stamp(a, 4)
    for r in range(16):
        a(f"v_cndmask_b32 v{SC+r}, v{SC+r}, v{SC+128+r}, s[{20+2*r}:{21+2*r}]")
    a(f"v_max3_f32 v{MX}, v{SC}, v{SC+1}, v{SC+2}")
    a(f"v_max3_f32 v{TMP}, v{SC+3}, v{SC+4}, v{SC+5}")
    k = 6
    tog = 0
    while k + 1 < 128:
        d = MX if tog == 0 else TMP
        a(f"v_max3_f32 v{d}, v{d}, v{SC+k}, v{SC+k+1}")
        k += 2; tog ^= 1
    a(f"v_max_f32 v{MX}, v{MX}, v{TMP}")
    a(f"v_mov_b32 v{TMP}, v{MX}")
    a("s_nop 1")
    a(f"v_permlane32_swap_b32 v{MX}, v{TMP}")
    a("s_nop 1")
    a(f"v_max_f32 v{MX}, v{MX}, v{TMP}")
    stamp(a, 5)
    def vread(t, j, dst):
        a(f"ds_read_b128 v[{dst}:{dst+3}], v{VADDR} offset:{(2*t+j)*672}")
    first = True
    for t in range(8):
        sc = SC + 16*t
        for r in range(16):
            a(f"v_sub_f32 v{sc+r}, v{sc+r}, v{MX}")
        for r in range(16):
            a(f"v_exp_f32 v{sc+r}, v{sc+r}")
        P = PF
        for e in range(8):
            a(f"v_cvt_pk_bf16_f32 v{P+e}, v{sc+2*e}, v{sc+2*e+1}")
        if t == 0:
            for e in range(8):
                a(f"v_and_b32 v{32+e}, v{P+e}, v{PM+e}")
            for e in range(8):
                a(f"v_xor_b32 v{P+e}, v{P+e}, v{32+e}")
            vread(8, 0, 40); vread(8, 1, 44)
            a("s_waitcnt lgkmcnt(0)")
            a(f"v_mfma_f32_32x32x16_bf16 v[{OA}:{OA+15}], v[40:43], v[32:35], 0")
            a(f"v_mfma_f32_32x32x16_bf16 v[{OA}:{OA+15}], v[44:47], v[36:39], v[{OA}:{OA+15}]")
        L = a.label("pv")
        a(f"s_cmp_lt_i32 s{S_KB0}, {-t}")
        a(f"s_cbranch_scc1 {L}")
        vread(t, 0, 48); vread(t, 1, 52)
        a("s_waitcnt lgkmcnt(0)")
        a(f"v_mfma_f32_32x32x16_bf16 v[{OA}:{OA+15}], v[48:51], v[{P}:{P+3}], v[{OA}:{OA+15}]")
        a(f"v_mfma_f32_32x32x16_bf16 v[{OA}:{OA+15}], v[52:55], v[{P+4}:{P+7}], v[{OA}:{OA+15}]")
        a(f"{L}:")
        a("s_nop 1")
    a("s_nop 7")
    a("s_nop 7")
    stamp(a, 6)
    a(f"""
    v_mov_b32 v{TMP}, v{OA+8}
    v_mov_b32 v{TMP2}, v{OA+8}
    s_nop 1
    v_permlane32_swap_b32 v{TMP}, v{TMP2}
    s_nop 1
    v_rcp_f32 v{TMP2}, v{TMP2}
    s_nop 0
    """)
    for r in range(12):
        a(f"v_mul_f32 v{OA+r}, v{OA+r}, v{TMP2}")
    for e in range(6):
        a(f"v_cvt_pk_bf16_f32 v{24+e}, v{OA+2*e}, v{OA+2*e+1}")
    a(f"""
    s_lshl_b32 s40, s{S_QB}, 8
    s_lshl_b32 s41, s{S_W}, 5
    s_add_u32 s40, s40, s41
    v_and_b32 v2, 31, v1
    v_add_u32 v2, s40, v2                  ; token
    v_lshlrev_b32 v3, 4, v2
    v_lshrrev_b32 v4, 5, v1
    v_lshl_add_u32 v3, v4, 15, v3
    s_lshl_b32 s41, s{S_H}, 16
    s_add_u32 s41, s41, {OFF_O}
    buffer_store_dwordx4 v[24:27], v3, s[{SRD_WS}:{SRD_WS+3}], s41 offen {st}
    v_lshlrev_b32 v3, 3, v2
    s_lshl_b32 s41, s{S_H}, 14
    s_add_u32 s41, s41, {OFF_O4}
    s_mov_b32 s54, -1
    s_mov_b32 s55, 0
    s_mov_b64 exec, s[54:55]
    buffer_store_dwordx2 v[28:29], v3, s[{SRD_WS}:{SRD_WS+3}], s41 offen {st}
    s_mov_b64 exec, -1
    """)

def p2_body(a, st="", ld="", presync=None, postload=None):
    p2_decode(a)
    if presync: presync(a)
    stamp(a, 1)
    p2_loads(a, ld)
    p2_setup(a)
    stamp(a, 2)
    a("s_waitcnt vmcnt(0) lgkmcnt(0)")
    p2_qfix(a)
    a("s_barrier")
    if postload: postload(a)
    stamp(a, 3)
    p2_compute(a, st)
```

```python
from common import *
from side import *

LB3 = [0, 40960, 81920]
L_RED = 0
P3_LDS = 3*40960
S_RBK=12; S_CB=13; S_T0_3=14; S_WB=15; S_MW=16; S_AH=17; S_AO=18; S_AO4=19
ACC3 = 64
AF = 96
BF = 128
VLANE = 170
VAH = 171
VAO4 = 172
VBR = 173
NSTEP = 68

def p3_decode(a):
    a(f"""
    s_and_b32 s40, s{S_WG}, 7
    s_lshr_b32 s41, s{S_WG}, 3
    s_lshr_b32 s42, s40, 1                 ; RG
    s_and_b32 s43, s40, 1                  ; CG
    s_and_b32 s44, s41, 7
    s_lshl_b32 s{S_RBK}, s42, 3
    s_add_u32 s{S_RBK}, s{S_RBK}, s44
    s_lshr_b32 s44, s41, 3
    s_lshl_b32 s{S_CB}, s43, 2
    s_add_u32 s{S_CB}, s{S_CB}, s44        ; cb
    s_lshl_b32 s{S_T0_3}, s{S_RBK}, 6
    """)

def p3_setup(a):
    a(f"""
    v_lshlrev_b32 v{VLANE}, 4, v1
    s_mul_i32 s{S_WB}, s{S_CB}, 68
    s_add_u32 s{S_WB}, s{S_WB}, s{S_W}
    s_mul_i32 s{S_WB}, s{S_WB}, 5120
    s_add_u32 s{S_WB}, s{S_WB}, {OFF_W3}
    s_mul_i32 s{S_MW}, s{S_W}, 5120
    s_and_b32 s40, s{S_W}, 3
    s_lshl_b32 s40, s40, 4
    s_add_u32 s40, s40, s{S_T0_3}
    v_and_b32 v2, 15, v1
    v_add_u32 v2, s40, v2                  ; token
    v_lshrrev_b32 v3, 4, v1                ; g
    v_lshlrev_b32 v4, 4, v2
    v_lshl_add_u32 v{VAH}, v3, 15, v4
    v_lshlrev_b32 v4, 3, v2
    v_lshl_add_u32 v{VAO4}, v3, 15, v4     ; g*2 heads*16384
    v_mov_b32 v{VBR}, v{VLANE}
    """)

def p3_dmaB(a, c, ld):
    nsteps = min(8, NSTEP - 8*c)
    L = None
    if nsteps < 8:
        L = a.label("p3skip")
        a(f"s_cmp_ge_u32 s{S_W}, {nsteps}")
        a(f"s_cbranch_scc1 {L}")
    for ct in range(5):
        a(f"s_add_u32 m0, s{S_MW}, {LB3[c%3] + ct*1024}")
        a(f"s_add_u32 s40, s{S_WB}, {c*8*5120 + ct*1024}")
        a(f"buffer_load_dwordx4 v{VLANE}, s[{SRD_WS}:{SRD_WS+3}], s40 offen {ld} lds")
    if L:
        a(f"{L}:")

def a_loads_for_step(a, s_expr_base, step, slot, ld):
    pass

def p3_aload(a, c, u, ld):
    base = 8*c + 2*u
    if base >= NSTEP: return 0
    dst = AF + 4*((c & 1)*4 + u)
    if base < 48:
        a(f"s_add_u32 s40, s{S_AH}, {OFF_H + base*4*32768}")
        a(f"buffer_load_dwordx4 v[{dst}:{dst+3}], v{VAH}, s[{SRD_WS}:{SRD_WS+3}], s40 offen {ld}")
        return 1
    elif base < 64:
        a(f"s_add_u32 s40, s{S_AH}, {OFF_O + (base-48)*4*32768}")
        a(f"buffer_load_dwordx4 v[{dst}:{dst+3}], v{VAH}, s[{SRD_WS}:{SRD_WS+3}], s40 offen {ld}")
        return 1
    else:
        a(f"s_add_u32 s40, s{S_AO4}, {OFF_O4 + (base-64)*8*16384}")
        a(f"buffer_load_dwordx2 v[{dst}:{dst+1}], v{VAO4}, s[{SRD_WS}:{SRD_WS+3}], s40 offen {ld}")
        a(f"s_add_u32 s40, s40, 16384")
        a(f"buffer_load_dwordx2 v[{dst+2}:{dst+3}], v{VAO4}, s[{SRD_WS}:{SRD_WS+3}], s40 offen {ld}")
        return 2

def p3_main(a, ld, sync_o=None, post0=None):
    NC = 9
    a(f"""
    s_lshr_b32 s41, s{S_W}, 2              ; kg
    s_lshl_b32 s{S_AH}, s41, 17            ; kg*4*32768
    s_lshl_b32 s{S_AO4}, s41, 17           ; kg*8*16384
    s_mul_i32 s42, s41, 5120
    v_add_u32 v{VBR}, s42, v{VLANE}
    """)
    for r in range(20):
        a(f"v_mov_b32 v{ACC3+r}, 0")
    def issue(c):
        if c == 6 and sync_o: sync_o(a)
        p3_dmaB(a, c, ld)
        n = 0
        for u in range(4):
            n += p3_aload(a, c, u, ld)
        return n
    stamp(a, 1)
    issue(0)
    issue(1)
    for c in range(NC):
        if c in (1, 4, 8): stamp(a, {1:3, 4:4, 8:5}[c])
        if c + 1 < NC:
            if c + 1 == 8:
                newer = 4
            else:
                newer = 9
            a(f"s_waitcnt vmcnt({newer})")
        else:
            a("s_waitcnt vmcnt(0)")
        a("s_barrier")
        if c == 0: stamp(a, 2)
        if c == 0 and post0: post0(a)
        nsub = 4 if c < 8 else 2
        st = LB3[c % 3]
        def bread(u, b):
            for ct in range(5):
                a(f"ds_read_b128 v[{BF+20*b+4*ct}:{BF+20*b+4*ct+3}], v{VBR} offset:{st + 2*u*5120 + ct*1024}") if st + 2*u*5120 + ct*1024 < 65536 else \
                a(f"ds_read_b128 v[{BF+20*b+4*ct}:{BF+20*b+4*ct+3}], v{VBR+1} offset:{st + 2*u*5120 + ct*1024 - 65536}")
        bread(0, 0)
        for u in range(nsub):
            b = u & 1
            if u + 1 < nsub:
                bread(u + 1, b ^ 1)
                a("s_waitcnt lgkmcnt(5)")
            else:
                a("s_waitcnt lgkmcnt(0)")
            af = AF + 4*((c & 1)*4 + u)
            for ct in range(5):
                acc = ACC3 + 4*ct
                a(f"v_mfma_f32_16x16x32_bf16 v[{acc}:{acc+3}], v[{BF+20*b+4*ct}:{BF+20*b+4*ct+3}], v[{af}:{af+3}], v[{acc}:{acc+3}]")
        if c + 2 < NC:
            issue(c + 2)

def p3_epilogue(a):
    a(f"""
    s_barrier
    s_lshr_b32 s41, s{S_W}, 2
    s_and_b32 s42, s{S_W}, 3
    s_mul_i32 s42, s42, 5120
    v_add_u32 v2, s42, v{VLANE}
    s_cmp_eq_u32 s41, 0
    s_cbranch_scc1 Lp3_k0
    s_nop 7
    """)
    for ct in range(5):
        a(f"ds_write_b128 v2, v[{ACC3+4*ct}:{ACC3+4*ct+3}] offset:{ct*1024}")
    a(f"""
    s_waitcnt lgkmcnt(0)
    s_barrier
    s_branch Lp3_end
Lp3_k0:
    """)
    srd(a, 20, P_B2, P_B2+1, B2B)
    srd(a, 24, P_OUT, P_OUT+1, OUTB)
    a(f"""
    s_and_b32 s42, s{S_W}, 3
    s_lshl_b32 s42, s42, 4
    s_add_u32 s42, s42, s{S_T0_3}
    v_and_b32 v3, 15, v1
    v_add_u32 v3, s42, v3
    v_mul_u32_u24 v3, 1280, v3
    v_lshrrev_b32 v4, 4, v1
    v_lshlrev_b32 v4, 3, v4                ; g*8 bytes
    s_mul_i32 s43, s{S_CB}, 160
    v_add_u32 v4, s43, v4
    v_add_u32 v3, v3, v4
    """)
    for ct in range(5):
        a(f"buffer_load_dwordx2 v[{96+2*ct}:{97+2*ct}], v3, s[{SRD_X}:{SRD_X+3}], 0 offen offset:{32*ct}")
        a(f"buffer_load_dwordx2 v[{108+2*ct}:{109+2*ct}], v4, s[20:23], 0 offen offset:{32*ct}")
    a("s_barrier")
    for ct in range(5):
        a(f"ds_read_b128 v[{128+4*ct}:{128+4*ct+3}], v2 offset:{ct*1024}")
    a("s_waitcnt vmcnt(0) lgkmcnt(0)")
    for ct in range(5):
        for r in range(4):
            acc = ACC3 + 4*ct + r
            xr = 96 + 2*ct + (r >> 1); br = 108 + 2*ct + (r >> 1)
            a(f"v_add_f32 v{acc}, v{acc}, v{128+4*ct+r}")
            if r & 1:
                a(f"v_and_b32 v5, 0xffff0000, v{xr}")
                a(f"v_and_b32 v6, 0xffff0000, v{br}")
            else:
                a(f"v_lshlrev_b32 v5, 16, v{xr}")
                a(f"v_lshlrev_b32 v6, 16, v{br}")
            a(f"v_add_f32 v5, v5, v6")
            a(f"v_add_f32 v{acc}, v{acc}, v5")
        a(f"v_cvt_pk_bf16_f32 v{150+2*ct}, v{ACC3+4*ct}, v{ACC3+4*ct+1}")
        a(f"v_cvt_pk_bf16_f32 v{151+2*ct}, v{ACC3+4*ct+2}, v{ACC3+4*ct+3}")
        a(f"buffer_store_dwordx2 v[{150+2*ct}:{151+2*ct}], v3, s[24:27], 0 offen offset:{32*ct}")
    a("Lp3_end:")

def p3_body(a, ld="", presync=None, sync_o=None, post0=None):
    p3_decode(a)
    p3_setup(a)
    a(f"v_add_u32 v{VBR+1}, 65536, v{VLANE}")
    if presync: presync(a)
    p3_main_wrap(a, ld, sync_o, post0)
    stamp(a, 6)
    p3_epilogue(a)

def p3_main_wrap(a, ld, sync_o, post0=None):
    a(f"""
    s_lshr_b32 s41, s{S_W}, 2
    s_mul_i32 s42, s41, 5120
    v_add_u32 v{VBR}, s42, v{VLANE}
    v_add_u32 v{VBR+1}, 65536, v{VBR}
    """)
    p3_main(a, ld, sync_o, post0)
```

```python
from common import *
from side import *
OFF_SEED = OFF_FLAGS
FA = OFF_FLAGS + 0x1000
FB = OFF_FLAGS + 0x2000
FQ = OFF_FLAGS + 0x3000
FH = OFF_FLAGS + 0x5000
FO = OFF_FLAGS + 0x7000
S_TAG = 60
SRD_DBG = 56
V_TAGLD = 255
SPIN = 1 << 16

def tag_boot(a):
    srd(a, SRD_DBG, P_DBG, P_DBG+1, 256)
    L = a.label("boot")
    a(f"""
    s_mov_b32 s{S_TAG}, 0
    s_cmp_lg_u32 s{S_W}, 0
    s_cbranch_scc1 {L}_end
    v_mov_b32 v2, 0
    s_cmp_lg_u32 s{S_WG}, 255
    s_cbranch_scc1 {L}_end
    s_mov_b32 s40, {OFF_SEED}
    buffer_load_dword v3, v2, s[{SRD_WS}:{SRD_WS+3}], s40 offen sc1
    s_waitcnt vmcnt(0)
    v_add_u32 v3, 0x9e3779b8, v3
    v_or_b32 v3, 1, v3
    buffer_store_dword v3, v2, s[{SRD_DBG}:{SRD_DBG+3}], 0 offen sc1
    buffer_store_dword v3, v2, s[{SRD_WS}:{SRD_WS+3}], s40 offen sc1
    s_nop 0
    v_readfirstlane_b32 s{S_TAG}, v3
{L}_end:
    """)

def get_tag(a, vt=2):
    L = a.label("tag")
    a(f"""
    s_cmp_lg_u32 s{S_TAG}, 0
    s_cbranch_scc1 {L}_ok
    s_mov_b32 s61, {SPIN}
    v_mov_b32 v{vt}, 0
{L}_loop:
    buffer_load_dword v{vt+1}, v{vt}, s[{SRD_DBG}:{SRD_DBG+3}], 0 offen sc1
    s_waitcnt vmcnt(0)
    v_readfirstlane_b32 s{S_TAG}, v{vt+1}
    s_nop 3
    s_cmp_lg_u32 s{S_TAG}, 0
    s_cbranch_scc1 {L}_ok
    s_sleep 2
    s_sub_u32 s61, s61, 1
    s_cmp_lg_u32 s61, 0
    s_cbranch_scc1 {L}_loop
{L}_ok:
    """)

def poll(a, base_sgpr_or_imm, n, vt=2, extra=None):
    L = a.label("poll")
    a(f"s_mov_b32 s62, {base_sgpr_or_imm}")
    a(f"v_lshlrev_b32 v{vt}, 4, v1")
    tot = n
    if extra:
        b2, n2 = extra
        a(f"s_sub_u32 s63, {b2}, {n*16}")
        a(f"v_add_u32 v{vt+1}, s63, v{vt}")
        a(f"v_add_u32 v{vt}, s62, v{vt}")
        a(f"v_cmp_le_u32 vcc, {n}, v1")
        a(f"s_nop 1")
        a(f"v_cndmask_b32 v{vt}, v{vt}, v{vt+1}, vcc")
        tot = n + n2
    else:
        a(f"v_add_u32 v{vt}, s62, v{vt}")
    a(f"""
    v_cmp_gt_u32 vcc, {tot}, v1
    s_and_saveexec_b64 s[52:53], vcc
    s_mov_b32 s61, {SPIN}
{L}_loop:
    buffer_load_dword v{vt+1}, v{vt}, s[{SRD_WS}:{SRD_WS+3}], 0 offen sc1
    s_waitcnt vmcnt(0)
    v_cmp_ne_u32 vcc, s{S_TAG}, v{vt+1}
    s_nop 4
    s_cmp_eq_u64 vcc, 0
    s_cbranch_scc1 {L}_done
    s_sleep 1
    s_sub_u32 s61, s61, 1
    s_cmp_lg_u32 s61, 0
    s_cbranch_scc1 {L}_loop
{L}_done:
    s_mov_b64 exec, s[52:53]
    """)

def signal(a, soff, vt=2):
    a(f"""
    v_mov_b32 v{vt}, 0
    v_mov_b32 v{vt+1}, s{S_TAG}
    s_mov_b64 s[52:53], exec
    s_mov_b64 exec, 1
    buffer_store_dword v{vt+1}, v{vt}, s[{SRD_WS}:{SRD_WS+3}], {soff} offen sc1
    s_mov_b64 exec, s[52:53]
    """)

class W0:
    def __init__(self, a): self.a = a
    def __enter__(self):
        self.L = self.a.label("w0")
        self.a(f"s_cmp_lg_u32 s{S_W}, 0")
        self.a(f"s_cbranch_scc1 {self.L}")
    def __exit__(self, *e):
        self.a(f"{self.L}:")
```

```python
import sys
sys.path.insert(0, "gen")
from common import *
from side import *
from sync import *
import p1, p2, p3, common, side

NAME = "parallel_sum__sliding_block__mixer_channel_mlp__prompt"
S_FHOFF = 86
ST = "sc1"; LD = "sc1"

def code_prefetch(a):
    L = a.label("pf")
    a(f"""
    s_cmp_lg_u32 s{S_W}, 1
    s_cbranch_scc1 {L}
    s_getpc_b64 s[40:41]
{L}_pc:
    s_sub_u32 s40, s40, {L}_pc-{NAME}_kernel
    s_subb_u32 s41, s41, 0
    s_lshr_b32 s42, s{S_WG}, 3
    s_lshl_b32 s42, s42, 11
    s_cmp_ge_u32 s42, Lcode_end-{NAME}_kernel
    s_cbranch_scc1 {L}
    v_lshlrev_b32 v2, 4, v1
    v_add_u32 v2, s42, v2
    global_load_dwordx4 v[240:243], v2, s[40:41]
    global_load_dwordx4 v[244:247], v2, s[40:41] offset:1024
{L}:
    """)

def build(stampmode=None):
    hdr = open("cdna_kernels/%s.s.ref" % NAME).read().split("; Override")[0]
    out = hdr
    out += f"; @launch grid=(256,1,1) block=(512,1,1) lds={p1.P1_LDS}\n"
    out += '.amdgcn_target "amdgcn-amd-amdhsa--gfx950"\n.text\n'
    a = Asm()
    a("s_cmp_ge_u32 s2, 256"); a("s_cbranch_scc1 Lend")
    if stampmode == "all": stamp(a, 0)
    prologue(a)
    code_prefetch(a)
    tag_boot(a)
    a(f"s_mov_b32 s{S_FHOFF}, 0")
    def p1_presync(a):
        with W0(a):
            get_tag(a)
            poll(a, FA, 40)
        a("s_barrier")
    def p1_sigq(a):
        a("s_waitcnt vmcnt(0)")
        a("s_barrier")
        with W0(a):
            a(f"""
            s_lshl_b32 s62, s{p1.S_RB}, 5
            s_add_u32 s62, s62, s{p1.S_PAIR}
            s_lshl_b32 s62, s62, 4
            s_add_u32 s63, s62, {FH}
            s_add_u32 s62, s62, {FQ}
            """)
            signal(a, "s62", vt=4)
            a(f"s_cmp_eq_u32 s{p1.S_ISH}, 1")
            a(f"s_cselect_b32 s{S_FHOFF}, s63, 0")
    saved = common.STAMP
    common.STAMP = saved and stampmode == "p1"
    if stampmode == "p1": stamp(a, 0)
    p1.p1_body(a, "Lside", ST, LD, presync=p1_presync, sigq=p1_sigq)
    common.STAMP = saved
    if stampmode == "all": stamp(a, 1)
    a("s_branch Lp2")
    a("Lside:")
    common.STAMP = False
    side_stats(a, 12, ST)
    side_cs(a, 12, ST)
    a("s_waitcnt vmcnt(0)")
    a("s_barrier")
    with W0(a):
        get_tag(a)
        a(f"s_lshl_b32 s62, s12, 4")
        a(f"s_add_u32 s62, s62, {FA}")
        signal(a, "s62")
    a(f"s_mov_b32 s30, s12")
    side_w3_step(a, 30, ST)
    L = a.label("w3_2")
    a(f"""
    s_add_u32 s30, s12, 40
    s_cmp_ge_u32 s30, 68
    s_cbranch_scc1 {L}
    """)
    side_w3_step(a, 30, ST)
    a(f"{L}:")
    a("s_waitcnt vmcnt(0)")
    a("s_barrier")
    with W0(a):
        a(f"s_lshl_b32 s62, s12, 4")
        a(f"s_add_u32 s62, s62, {FB}")
        signal(a, "s62")
    common.STAMP = saved
    if stampmode == "all": stamp(a, 1)
    a("Lp2:")
    def p2_presync(a):
        with W0(a):
            get_tag(a)
            a(f"""
            s_lshl_b32 s54, s{p2.S_QB}, 9
            s_add_u32 s54, s54, {FQ}
            s_sub_u32 s55, s54, 512
            s_cmp_eq_u32 s{p2.S_QB}, 0
            s_cselect_b32 s55, s54, s55
            """)
            poll(a, "s54", 27, extra=("s55", 27))
        a("s_barrier")
    def p2_postload(a):
        with W0(a):
            L = a.label("fh")
            a(f"s_cmp_eq_u32 s{S_FHOFF}, 0")
            a(f"s_cbranch_scc1 {L}")
            signal(a, f"s{S_FHOFF}")
            a(f"{L}:")
        a(f"""
        s_lshl_b32 s{S_FHOFF}, s{p2.S_QB}, 5
        s_add_u32 s{S_FHOFF}, s{S_FHOFF}, s{p2.S_H}
        s_lshl_b32 s{S_FHOFF}, s{S_FHOFF}, 4
        s_add_u32 s{S_FHOFF}, s{S_FHOFF}, {FO}
        """)
    common.STAMP = saved and stampmode == "p2"
    if stampmode == "p2": stamp(a, 0)
    p2.p2_body(a, ST, LD, presync=p2_presync, postload=p2_postload)
    common.STAMP = saved
    if stampmode == "all": stamp(a, 2)
    def p3_presync(a):
        with W0(a):
            a(f"""
            s_lshr_b32 s54, s{p3.S_RBK}, 2
            s_lshl_b32 s54, s54, 9
            s_add_u32 s54, s54, {FH}
            s_mov_b32 s55, {FB}
            """)
            poll(a, "s54", 24, extra=("s55", 40))
        a("s_barrier")
    def p3_post0(a):
        with W0(a):
            signal(a, f"s{S_FHOFF}")
    def p3_sync_o(a):
        with W0(a):
            a(f"""
            s_lshr_b32 s54, s{p3.S_RBK}, 2
            s_lshl_b32 s54, s54, 9
            s_add_u32 s54, s54, {FO}
            """)
            poll(a, "s54", 32)
        a("s_barrier")
    common.STAMP = saved and stampmode == "p3"
    if stampmode == "p3": stamp(a, 0)
    p3.p3_body(a, LD, presync=p3_presync, sync_o=p3_sync_o, post0=p3_post0)
    common.STAMP = saved
    if saved:
        a("s_waitcnt vmcnt(0)")
        if stampmode == "all": stamp(a, 3)
        stamp_dump(a, 0)
    a("Lend:"); a("s_endpgm")
    out += header(NAME + "_kernel") + a.text()
    out += "Lcode_end:\n.fill 576, 4, 0xBF800000\n"
    out += '.section .rodata,"a"\n' + desc(NAME + "_kernel")
    return out

if __name__ == "__main__":
    mode = sys.argv[2] if len(sys.argv) > 2 else None
    if mode: common.STAMP = True
    s = build(mode)
    open(sys.argv[1], "w").write(s)
    print(len(s))
```

```python
import sys
sys.path.insert(0, "gen")
from common import *
from side import *
from sync import *
import p1, p2, p3, common, side

NAME = "parallel_sum__sliding_block__mixer_channel_mlp__prompt"
S_FHOFF = 86
ST = "sc1"; LD = "sc1"

def code_prefetch(a):
    L = a.label("pf")
    a(f"""
    s_cmp_lg_u32 s{S_W}, 1
    s_cbranch_scc1 {L}
    s_getpc_b64 s[40:41]
{L}_pc:
    s_sub_u32 s40, s40, {L}_pc-{NAME}_kernel
    s_subb_u32 s41, s41, 0
    s_lshr_b32 s42, s{S_WG}, 3
    s_lshl_b32 s42, s42, 11
    s_cmp_ge_u32 s42, Lcode_end-{NAME}_kernel
    s_cbranch_scc1 {L}
    v_lshlrev_b32 v2, 4, v1
    v_add_u32 v2, s42, v2
    global_load_dwordx4 v[240:243], v2, s[40:41]
    global_load_dwordx4 v[244:247], v2, s[40:41] offset:1024
{L}:
    """)

def build(stampmode=None):
    hdr = open("cdna_kernels/%s.s.ref" % NAME).read().split("; Override")[0]
    out = hdr
    out += f"; @launch grid=(256,1,1) block=(512,1,1) lds={p1.P1_LDS}\n"
    out += '.amdgcn_target "amdgcn-amd-amdhsa--gfx950"\n.text\n'
    a = Asm()
    a("s_cmp_ge_u32 s2, 256"); a("s_cbranch_scc1 Lend")
    if stampmode in ("all", "dbg"): stamp(a, 0)
    if stampmode == "dbg": a("s_memrealtime s[96:97]")
    prologue(a)
    code_prefetch(a)
    tag_boot(a)
    a(f"s_mov_b32 s{S_FHOFF}, 0")
    def p1_presync(a):
        with W0(a):
            get_tag(a)
            poll(a, FA, 40)
        a("s_barrier")
    def p1_sigq(a):
        a("s_waitcnt vmcnt(0)")
        a("s_barrier")
        with W0(a):
            a(f"""
            s_lshl_b32 s62, s{p1.S_RB}, 5
            s_add_u32 s62, s62, s{p1.S_PAIR}
            s_lshl_b32 s62, s62, 4
            s_add_u32 s63, s62, {FH}
            s_add_u32 s62, s62, {FQ}
            """)
            signal(a, "s62", vt=4)
            a(f"s_cmp_eq_u32 s{p1.S_ISH}, 1")
            a(f"s_cselect_b32 s{S_FHOFF}, s63, 0")
    saved = common.STAMP
    common.STAMP = saved and stampmode == "p1"
    if stampmode == "p1": stamp(a, 0)
    p1.p1_body(a, "Lside", ST, LD, presync=p1_presync, sigq=p1_sigq)
    common.STAMP = saved
    if stampmode in ("all", "dbg"): stamp(a, 1)
    a("s_branch Lp2")
    a("Lside:")
    common.STAMP = False
    side_stats(a, 12, ST)
    side_cs(a, 12, ST)
    a("s_waitcnt vmcnt(0)")
    a("s_barrier")
    with W0(a):
        get_tag(a)
        a(f"s_lshl_b32 s62, s12, 4")
        a(f"s_add_u32 s62, s62, {FA}")
        signal(a, "s62")
    a(f"s_mov_b32 s30, s12")
    side_w3_step(a, 30, ST)
    L = a.label("w3_2")
    a(f"""
    s_add_u32 s30, s12, 40
    s_cmp_ge_u32 s30, 68
    s_cbranch_scc1 {L}
    """)
    side_w3_step(a, 30, ST)
    a(f"{L}:")
    a("s_waitcnt vmcnt(0)")
    a("s_barrier")
    with W0(a):
        a(f"s_lshl_b32 s62, s12, 4")
        a(f"s_add_u32 s62, s62, {FB}")
        signal(a, "s62")
    common.STAMP = saved
    if stampmode in ("all", "dbg"): stamp(a, 1)
    a("Lp2:")
    def p2_presync(a):
        with W0(a):
            get_tag(a)
            a(f"""
            s_lshl_b32 s54, s{p2.S_QB}, 9
            s_add_u32 s54, s54, {FQ}
            s_sub_u32 s55, s54, 512
            s_cmp_eq_u32 s{p2.S_QB}, 0
            s_cselect_b32 s55, s54, s55
            """)
            poll(a, "s54", 27, extra=("s55", 27))
        a("s_barrier")
    def p2_postload(a):
        with W0(a):
            L = a.label("fh")
            a(f"s_cmp_eq_u32 s{S_FHOFF}, 0")
            a(f"s_cbranch_scc1 {L}")
            signal(a, f"s{S_FHOFF}")
            a(f"{L}:")
        a(f"""
        s_lshl_b32 s{S_FHOFF}, s{p2.S_QB}, 5
        s_add_u32 s{S_FHOFF}, s{S_FHOFF}, s{p2.S_H}
        s_lshl_b32 s{S_FHOFF}, s{S_FHOFF}, 4
        s_add_u32 s{S_FHOFF}, s{S_FHOFF}, {FO}
        """)
    common.STAMP = saved and stampmode == "p2"
    if stampmode == "p2": stamp(a, 0)
    p2.p2_body(a, ST, LD, presync=p2_presync, postload=p2_postload)
    common.STAMP = saved
    if stampmode in ("all", "dbg"): stamp(a, 2)
    def p3_presync(a):
        with W0(a):
            a(f"""
            s_lshr_b32 s54, s{p3.S_RBK}, 2
            s_lshl_b32 s54, s54, 9
            s_add_u32 s54, s54, {FH}
            s_mov_b32 s55, {FB}
            """)
            poll(a, "s54", 24, extra=("s55", 40))
        a("s_barrier")
    def p3_post0(a):
        with W0(a):
            signal(a, f"s{S_FHOFF}")
    def p3_sync_o(a):
        with W0(a):
            a(f"""
            s_lshr_b32 s54, s{p3.S_RBK}, 2
            s_lshl_b32 s54, s54, 9
            s_add_u32 s54, s54, {FO}
            """)
            poll(a, "s54", 32)
        a("s_barrier")
    common.STAMP = saved and stampmode == "p3"
    if stampmode == "p3": stamp(a, 0)
    p3.p3_body(a, LD, presync=p3_presync, sync_o=p3_sync_o, post0=p3_post0)
    common.STAMP = saved
    if saved and stampmode != "dbg":
        a("s_waitcnt vmcnt(0)")
        if stampmode == "all": stamp(a, 3)
        stamp_dump(a, 0)
    if stampmode == "dbg":
        a("s_waitcnt vmcnt(0)")
        stamp(a, 3)
        a("s_memrealtime s[98:99]")
        a("s_waitcnt lgkmcnt(0)")
        L = a.label("dd")
        for k, wg in enumerate((0, 100, 255)):
            a(f"s_cmp_lg_u32 s2, {wg}")
            a(f"s_cbranch_scc1 {L}_{k}")
            a(f"s_cmp_lg_u32 s3, 0")
            a(f"s_cbranch_scc1 {L}_{k}")
            a("v_mov_b32 v2, 0")
            for i in range(1, 4):
                a(f"s_sub_u32 s40, s{88+2*i}, s88")
                a(f"v_mov_b32 v3, s40")
                a(f"buffer_store_dword v3, v2, s[{SRD_DBG}:{SRD_DBG+3}], 0 offen offset:{4*(1+5*k+i-1)}")
            a(f"s_sub_u32 s40, s98, s96")
            a(f"v_mov_b32 v3, s40")
            a(f"buffer_store_dword v3, v2, s[{SRD_DBG}:{SRD_DBG+3}], 0 offen offset:{4*(1+5*k+3)}")
            a(f"{L}_{k}:")
    a("Lend:"); a("s_endpgm")
    out += header(NAME + "_kernel") + a.text()
    out += "Lcode_end:\n.fill 576, 4, 0xBF800000\n"
    out += '.section .rodata,"a"\n' + desc(NAME + "_kernel")
    return out

if __name__ == "__main__":
    mode = sys.argv[2] if len(sys.argv) > 2 else None
    if mode: common.STAMP = True
    s = build(mode)
    open(sys.argv[1], "w").write(s)
    print(len(s))
```

```python
from common import *
from side import *

LA = [0, 32768, 65536]
LW = [98304, 114688, 131072]
L_CS = 147456
L_B1 = L_CS + 512
L_M  = L_B1 + 256
L_R  = L_M + 1024
P1_LDS = L_R + 1024

ACC = 64
XF = 128
WF = 144
XADDR = 160
WADDR = 168
VA = 169
VB0 = 170; VB1 = 171
S_RB=12; S_PAIR=13; S_T0=14; S_PA=15; S_PB=16; S_TYPEA=17; S_ISH=18
SRD_W=20
S_SA=24
S_SB=28
S_WSTEP=29
S_MA=30
S_MB=31

def p1_decode(a, Lside):
    a(f"""
    s_and_b32 s40, s{S_WG}, 7              ; xcd j
    s_lshr_b32 s41, s{S_WG}, 3             ; idx
    s_and_b32 s42, s40, 1                  ; RG
    s_lshr_b32 s43, s40, 1                 ; CG
    s_cmp_lt_u32 s43, 3
    s_cselect_b32 s44, 28, 24              ; ngemm
    s_cmp_lt_u32 s41, s44
    s_cbranch_scc1 Lp1_gemm
    s_sub_u32 s45, s41, s44
    s_cmp_lt_u32 s40, 6
    s_cbranch_scc0 Lp1_side2
    s_lshl_b32 s12, s40, 2
    s_add_u32 s12, s12, s45
    s_branch {Lside}
Lp1_side2:
    s_sub_u32 s12, s40, 6
    s_lshl_b32 s12, s12, 3
    s_add_u32 s12, s12, 24
    s_add_u32 s12, s12, s45
    s_branch {Lside}
Lp1_gemm:
    s_and_b32 s45, s41, 3
    s_lshl_b32 s{S_RB}, s42, 2
    s_add_u32 s{S_RB}, s{S_RB}, s45        ; rb
    s_lshr_b32 s45, s41, 2
    s_mul_i32 s{S_PAIR}, s43, 7
    s_add_u32 s{S_PAIR}, s{S_PAIR}, s45    ; pair
    s_lshl_b32 s{S_T0}, s{S_RB}, 8
    ; pieces
    s_cmp_lt_u32 s{S_PAIR}, 10
    s_cbranch_scc0 Lp1_d1
    s_add_u32 s{S_PA}, s{S_PAIR}, 20       ; V piece (20..29)
    s_mov_b32 s{S_PB}, s{S_PAIR}
    s_mov_b32 s{S_TYPEA}, 2
    s_mov_b32 s{S_ISH}, 1
    s_branch Lp1_d3
Lp1_d1:
    s_cmp_lt_u32 s{S_PAIR}, 24
    s_cbranch_scc0 Lp1_d2
    s_sub_u32 s{S_PA}, s{S_PAIR}, 10
    s_mov_b32 s{S_PB}, s{S_PAIR}
    s_cmp_ge_u32 s{S_PA}, 10
    s_cselect_b32 s{S_TYPEA}, 1, 0
    s_mov_b32 s{S_ISH}, 1
    s_branch Lp1_d3
Lp1_d2:
    s_sub_u32 s{S_PA}, s{S_PAIR}, 24
    s_lshl_b32 s{S_PA}, s{S_PA}, 1
    s_add_u32 s{S_PA}, s{S_PA}, 14         ; 14,16,18
    s_add_u32 s{S_PB}, s{S_PA}, 1
    s_mov_b32 s{S_TYPEA}, 1
    s_mov_b32 s{S_ISH}, 0
Lp1_d3:
    """)

def p1_setup_post(a):
    a(f"""
    s_lshr_b32 s40, s{S_W}, 2              ; p
    s_and_b32 s42, s40, s{S_ISH}           ; 1 -> w1
    s_cmp_eq_u32 s42, 1
    s_cselect_b32 s{SRD_W}, s{P_W1}, s{P_WQKV}
    s_cselect_b32 s{SRD_W+1}, s{P_W1+1}, s{P_WQKV+1}
    s_mov_b32 s{SRD_W+2}, {WQKVB}
    s_cselect_b32 s{SRD_W+2}, {W1B}, s{SRD_W+2}
    s_and_b32 s{SRD_W+1}, s{SRD_W+1}, 0xffff
    s_mov_b32 s{SRD_W+3}, 0x20000
    """)

def p1_setup(a):
    p1_setup_pre(a)
    p1_setup_post(a)

def p1_setup_pre(a):
    a(f"""
    s_lshr_b32 s40, s{S_W}, 2              ; p
    s_and_b32 s41, s{S_W}, 3
    s_and_b32 s42, s40, s{S_ISH}           ; 1 -> w1
    s_cmp_eq_u32 s40, 0
    s_cselect_b32 s43, s{S_PA}, s{S_PB}
    s_lshl_b32 s43, s43, 7                 ; *128 bytes
    s_cmp_eq_u32 s42, 1
    s_movk_i32 s44, 3840
    s_cselect_b32 s44, 3072, s44           ; stride
    s_lshl_b32 s{S_WSTEP}, s44, 6          ; 64 rows
    s_mov_b32 s{S_SB}, s43
    v_lshrrev_b32 v2, 3, v1
    v_and_b32 v3, 7, v1
    v_lshrrev_b32 v4, 1, v2
    v_and_b32 v4, 1, v4
    v_lshlrev_b32 v4, 2, v4
    v_xor_b32 v3, v3, v4
    s_lshl_b32 s45, s41, 4
    v_add_u32 v2, s45, v2
    v_mul_lo_u32 v2, v2, s44
    v_lshl_add_u32 v{VB0}, v3, 4, v2
    s_lshl_b32 s45, s44, 3
    v_add_u32 v{VB1}, s45, v{VB0}
    s_lshl_b32 s{S_MB}, s40, 13
    s_lshl_b32 s45, s41, 11
    s_add_u32 s{S_MB}, s{S_MB}, s45        ; p*8192 + (w&3)*2048
    v_lshrrev_b32 v2, 3, v1
    v_and_b32 v3, 7, v1
    v_lshrrev_b32 v4, 4, v1
    s_and_b32 s45, s{S_W}, 1
    s_lshl_b32 s45, s45, 2
    v_or_b32 v4, s45, v4
    v_xor_b32 v3, v3, v4
    s_lshl_b32 s45, s{S_W}, 3
    s_add_u32 s45, s45, s{S_T0}
    v_add_u32 v2, s45, v2
    v_mul_u32_u24 v2, 1280, v2
    v_lshl_add_u32 v{VA}, v3, 4, v2
    s_mov_b32 s{S_SA}, 0
    s_mov_b32 s{S_SA+1}, 81920
    s_mov_b32 s{S_SA+2}, 163840
    s_mov_b32 s{S_SA+3}, 245760
    s_lshl_b32 s{S_MA}, s{S_W}, 10
    v_and_b32 v2, 31, v1
    s_lshl_b32 s45, s41, 6
    v_add_u32 v2, s45, v2                  ; row
    v_lshrrev_b32 v3, 1, v2
    v_and_b32 v3, 7, v3
    v_lshrrev_b32 v4, 5, v1                ; hf
    v_xor_b32 v3, v3, v4
    v_lshlrev_b32 v3, 4, v3
    v_lshl_add_u32 v{XADDR}, v2, 7, v3
    v_xor_b32 v{XADDR+1}, 32, v{XADDR}
    v_xor_b32 v{XADDR+2}, 64, v{XADDR}
    v_xor_b32 v{XADDR+3}, 96, v{XADDR}
    v_add_u32 v{XADDR+4}, 65536, v{XADDR}
    v_add_u32 v{XADDR+5}, 65536, v{XADDR+1}
    v_add_u32 v{XADDR+6}, 65536, v{XADDR+2}
    v_add_u32 v{XADDR+7}, 65536, v{XADDR+3}
    v_and_b32 v2, 15, v1
    v_lshrrev_b32 v3, 4, v1
    v_lshrrev_b32 v4, 1, v3
    v_lshlrev_b32 v4, 3, v4
    v_lshrrev_b32 v5, 2, v2
    v_add_u32 v4, v4, v5                   ; row
    v_and_b32 v5, 3, v2                    ; c
    v_and_b32 v6, 1, v5
    v_lshrrev_b32 v5, 1, v5
    v_lshl_or_b32 v5, v6, 1, v5            ; swap(c) = ((c&1)<<1)|(c>>1)
    v_and_b32 v3, 1, v3
    v_lshl_add_u32 v5, v3, 2, v5
    s_lshl_b32 s45, s40, 3                 ; nh = w>>2
    v_add_u32 v5, s45, v5                  ; quad
    v_lshlrev_b32 v5, 3, v5
    v_lshrrev_b32 v6, 3, v2
    v_lshlrev_b32 v6, 6, v6
    v_xor_b32 v5, v5, v6
    v_lshl_add_u32 v5, v4, 7, v5
    v_add_u32 v{WADDR}, {LW[0]}, v5
    """)

EXP = set()
EXTRA0 = 0
NOST5 = False
CSTAMP = None
POLLC = 7
XFL = ''
WFL = ''
def p1_dma(a, c):
    if "nodma" in EXP and c >= 3: return
    _p1_dma(a, c)
def _p1_dma(a, c):
    st = c % 3
    for q in range(4):
        a(f"s_add_u32 m0, s{S_MA}, {LA[st] + q*8192}")
        a(f"s_nop 0")
        a(f"buffer_load_dwordx4 v{VA}, s[{SRD_X}:{SRD_X+3}], s{S_SA+q} offen {XFL} lds")
    a(f"s_add_u32 m0, s{S_MB}, {LW[st]}")
    a(f"s_nop 0")
    a(f"buffer_load_dwordx4 v{VB0}, s[{SRD_W}:{SRD_W+3}], s{S_SB} offen {WFL} lds")
    a(f"s_add_u32 m0, s{S_MB}, {LW[st] + 1024}")
    a(f"s_nop 0")
    a(f"buffer_load_dwordx4 v{VB1}, s[{SRD_W}:{SRD_W+3}], s{S_SB} offen {WFL} lds")
    for q in range(4):
        a(f"s_add_u32 s{S_SA+q}, s{S_SA+q}, 128")
    a(f"s_add_u32 s{S_SB}, s{S_SB}, s{S_WSTEP}")

def p1_dma_part(a, c, part):
    if "nodma" in EXP and c >= 3: return []
    st = c % 3
    g = []
    if part < 2:
        for q in (2*part, 2*part+1):
            g.append(f"s_add_u32 m0, s{S_MA}, {LA[st] + q*8192}\ns_nop 0\nbuffer_load_dwordx4 v{VA}, s[{SRD_X}:{SRD_X+3}], s{S_SA+q} offen {XFL} lds\ns_add_u32 s{S_SA+q}, s{S_SA+q}, 128")
    else:
        g.append(f"s_add_u32 m0, s{S_MB}, {LW[st]}\ns_nop 0\nbuffer_load_dwordx4 v{VB0}, s[{SRD_W}:{SRD_W+3}], s{S_SB} offen {WFL} lds")
        g.append(f"s_add_u32 m0, s{S_MB}, {LW[st] + 1024}\ns_nop 0\nbuffer_load_dwordx4 v{VB1}, s[{SRD_W}:{SRD_W+3}], s{S_SB} offen {WFL} lds\ns_add_u32 s{S_SB}, s{S_SB}, s{S_WSTEP}")
    return g

def p1_reads(a, c, s, buf):
    if "noreads" in EXP: return
    st = c % 3
    xa = XADDR + s + (4 if st == 2 else 0)
    xo = LA[st] - (65536 if st == 2 else 0)
    for i in range(2):
        a(f"ds_read_b128 v[{XF+8*buf+4*i}:{XF+8*buf+4*i+3}], v{xa} offset:{xo + i*4096}")
    for p in range(2):
        wo = (LW[st] - LW[0]) + p*8192 + s*2048
        a(f"ds_read_b64_tr_b16 v[{WF+8*buf+4*p}:{WF+8*buf+4*p+1}], v{WADDR} offset:{wo}")
        a(f"ds_read_b64_tr_b16 v[{WF+8*buf+4*p+2}:{WF+8*buf+4*p+3}], v{WADDR} offset:{wo + 512}")

def p1_mfma(a, buf, vform, first, inter=()):
    inter = list(inter)
    if "nomfma" in EXP:
        for g in inter: a(g)
        return
    n = 0
    for i in range(2):
        for p in range(2):
            acc = ACC + 32*i + 16*p
            x = f"v[{XF+8*buf+4*i}:{XF+8*buf+4*i+3}]"
            w = f"v[{WF+8*buf+4*p}:{WF+8*buf+4*p+3}]"
            c = "0" if first else f"v[{acc}:{acc+15}]"
            if vform and p == 0:
                a(f"v_mfma_f32_32x32x16_bf16 v[{acc}:{acc+15}], {x}, {w}, {c}")
            else:
                a(f"v_mfma_f32_32x32x16_bf16 v[{acc}:{acc+15}], {w}, {x}, {c}")
            if n in (0, 2) and inter:
                a(inter.pop(0))
            n += 1
    for g in inter: a(g)

def p1_mainloop(a, vform, pre=None, post=None, first_extra=0):
    NC = 10
    a(f"s_waitcnt vmcnt({6 + first_extra})")
    a("s_barrier")
    if not CSTAMP: stamp(a, 2)
    p1_reads(a, 0, 0, 0)
    buf = 0
    for c in range(NC):
        for s in range(4):
            if s < 3:
                p1_reads(a, c, s+1, buf ^ 1)
                a("s_waitcnt lgkmcnt(6)")
                inter = []
                if c == 0:
                    inter = p1_dma_part(a, 2, s)
                elif s < 2 and c + 2 < NC:
                    inter = p1_dma_part(a, c + 2, s + 1)
                p1_mfma(a, buf, vform, c == 0 and s == 0, inter)
            else:
                a("s_waitcnt lgkmcnt(0)")
                inter = []
                if c + 1 < NC:
                    rem = 6 if c + 2 < NC else 0
                    if c == 0: rem += first_extra
                    if CSTAMP and c in CSTAMP: stamp(a, CSTAMP[c][0])
                    if pre: rem = pre(a, c, rem)
                    if rem is not None: a(f"s_waitcnt vmcnt({rem})")
                    a("s_barrier")
                    if CSTAMP and c in CSTAMP and CSTAMP[c][1]: stamp(a, CSTAMP[c][1])
                    if post: post(a, c)
                    if c + 3 < NC:
                        inter = p1_dma_part(a, c + 3, 0)
                    p1_reads(a, c + 1, 0, buf ^ 1)
                p1_mfma(a, buf, vform, False, inter)
            buf ^= 1

def p1_consts_issue(a, ld=""):
    L = a.label("cst")
    a(f"""
    s_cmp_lt_u32 s{S_W}, 2
    s_cbranch_scc1 {L}_cs
    s_cmp_eq_u32 s{S_W}, 2
    s_cbranch_scc1 {L}_b1
    s_sub_u32 s40, s{S_W}, 4
    s_and_b32 s40, s40, 3
    s_lshl_b32 s40, s40, 6
    s_add_u32 s40, s40, s{S_T0}
    v_add_u32 v2, s40, v1
    v_lshlrev_b32 v2, 4, v2
    buffer_load_dwordx2 v[180:181], v2, s[{SRD_WS}:{SRD_WS+3}], 0 offen offset:{OFF_STATS} {ld}
    s_branch {L}_st
{L}_cs:
    s_lshl_b32 s40, s{S_PA}, 6
    s_lshl_b32 s41, s{S_PB}, 6
    s_cmp_eq_u32 s{S_ISH}, 1
    s_cselect_b32 s42, 1920, 0
    s_add_u32 s41, s41, s42
    s_cmp_eq_u32 s{S_W}, 0
    s_cselect_b32 s40, s40, s41
    v_add_u32 v2, s40, v1
    v_lshlrev_b32 v2, 2, v2
    s_mov_b32 s42, {OFF_CS}
    buffer_load_dword v180, v2, s[{SRD_WS}:{SRD_WS+3}], s42 offen {ld}
    s_branch {L}_st
{L}_b1:
    """)
    srd(a, 48, P_B1, P_B1+1, B1B)
    a(f"""
    s_lshl_b32 s40, s{S_PB}, 7
    v_lshlrev_b32 v3, 1, v1
    buffer_load_ushort v180, v3, s[48:51], s40 offen
{L}_st:
    s_and_b32 s40, s{S_W}, 3
    s_lshl_b32 s40, s40, 6
    s_add_u32 s40, s40, s{S_T0}
    v_and_b32 v2, 31, v1
    v_add_u32 v2, s40, v2
    v_lshlrev_b32 v2, 4, v2
    buffer_load_dwordx4 v[172:175], v2, s[{SRD_WS}:{SRD_WS+3}], 0 offen offset:{OFF_STATS} {ld}
    buffer_load_dwordx4 v[176:179], v2, s[{SRD_WS}:{SRD_WS+3}], 0 offen offset:{OFF_STATS+512} {ld}
    """)

def p1_consts_commit(a):
    L = a.label("cmt")
    a(f"""
    v_lshlrev_b32 v2, 2, v1
    s_cmp_lt_u32 s{S_W}, 2
    s_cbranch_scc1 {L}_cs
    s_cmp_eq_u32 s{S_W}, 2
    s_cbranch_scc1 {L}_b1
    s_cmp_lt_u32 s{S_W}, 4
    s_cbranch_scc1 {L}_e
    s_sub_u32 s40, s{S_W}, 4
    s_lshl_b32 s40, s40, 8
    s_add_u32 s40, s40, {L_M}
    v_add_u32 v2, s40, v2
    ds_write_b32 v2, v180
    ds_write_b32 v2, v181 offset:1024
    s_branch {L}_e
{L}_cs:
    s_lshl_b32 s40, s{S_W}, 8
    s_add_u32 s40, s40, {L_CS}
    v_add_u32 v2, s40, v2
    ds_write_b32 v2, v180
    s_branch {L}_e
{L}_b1:
    v_add_u32 v2, {L_B1}, v2
    v_lshlrev_b32 v180, 16, v180
    ds_write_b32 v2, v180
{L}_e:
    """)

def epi_T(a, p, gelu, st, defer=False):
    for i in range(2):
        b = 172 + 4*i
        if gelu:
            a(f"v_mov_b32 v{180+i}, v{b+2}")
        else:
            if p == 0:
                a(f"s_cmp_eq_u32 s{S_TYPEA}, 0")
                a(f"s_cselect_b64 vcc, -1, 0")
                a(f"v_cndmask_b32 v{180+i}, v{b+1}, v{b+3}, vcc")
            else:
                a(f"v_mov_b32 v{180+i}, v{b+1}")
        a(f"v_mul_f32 v{182+i}, v{180+i}, v{b}")
        a(f"v_sub_f32 v{182+i}, 0, v{182+i}")
    a(f"""
    s_lshr_b32 s40, s{S_W}, 2
    s_lshl_b32 s41, s40, 7
    v_lshrrev_b32 v2, 5, v1
    v_lshlrev_b32 v2, 5, v2
    v_add_u32 v2, s41, v2
    v_add_u32 v2, {L_CS}, v2
    """)
    a(f"""
    s_and_b32 s42, s{S_W}, 3
    s_lshl_b32 s42, s42, 6
    s_add_u32 s42, s42, s{S_T0}
    v_and_b32 v3, 31, v1
    v_add_u32 v3, s42, v3
    v_lshlrev_b32 v3, 4, v3
    v_lshrrev_b32 v4, 5, v1
    v_lshl_add_u32 v3, v4, 15, v3
    s_lshl_b32 s43, s{S_PA if p == 0 else S_PB}, 3
    s_lshl_b32 s44, s40, 2
    s_add_u32 s43, s43, s44
    s_lshl_b32 s43, s43, 15
    s_add_u32 s43, s43, {OFF_H if gelu else OFF_QK}
    """)
    if gelu:
        a(f"s_mov_b32 s46, {fhex(GC1)}")
        a(f"s_mov_b32 s47, {fhex(GC2)}")
    for j in range(2):
        a(f"ds_read_b128 v[184:187], v2 offset:{p*256 + j*64}")
        a(f"ds_read_b128 v[188:191], v2 offset:{p*256 + j*64 + 16}")
        if gelu:
            a(f"ds_read_b128 v[192:195], v2 offset:{L_B1 - L_CS + j*64}")
            a(f"ds_read_b128 v[196:199], v2 offset:{L_B1 - L_CS + j*64 + 16}")
        a("s_waitcnt lgkmcnt(0)")
        for i in range(2):
            acc = ACC + 32*i + 16*p + 8*j
            T = 200
            for e in range(8):
                if gelu:
                    a(f"v_fma_f32 v{T+e}, v{182+i}, v{184+e}, v{192+e}")
                else:
                    a(f"v_mul_f32 v{T+e}, v{182+i}, v{184+e}")
            for e in range(8):
                a(f"v_fma_f32 v{acc+e}, v{180+i}, v{acc+e}, v{T+e}")
            if gelu:
                for e in range(8):
                    a(f"v_mul_f32 v{T+e}, v{acc+e}, v{acc+e}")
                a(f"v_mov_b32 v{T+8}, s46")
                for e in range(8):
                    a(f"v_fma_f32 v{T+e}, v{T+e}, s47, v{T+8}")
                for e in range(8):
                    a(f"v_mul_f32 v{T+e}, v{T+e}, v{acc+e}")
                for e in range(8):
                    a(f"v_exp_f32 v{T+e}, v{T+e}")
                for e in range(8):
                    a(f"v_add_f32 v{T+e}, 1.0, v{T+e}")
                for e in range(8):
                    a(f"v_rcp_f32 v{T+e}, v{T+e}")
                for e in range(8):
                    a(f"v_mul_f32 v{acc+e}, v{acc+e}, v{T+e}")
            PK = (220 + 8*j + 4*i) if defer else (216 + 4*i)
            for e in range(4):
                a(f"v_cvt_pk_bf16_f32 v{PK+e}, v{acc+2*e}, v{acc+2*e+1}")
            if not defer:
                a(f"s_add_u32 s44, s43, {j*65536}")
                a(f"buffer_store_dwordx4 v[{PK}:{PK+3}], v3, s[{SRD_WS}:{SRD_WS+3}], s44 offen offset:{i*512} {st}")
        if defer and j == 0:
            defer(a)
    if defer:
        for j in range(2):
            for i in range(2):
                PK = 220 + 8*j + 4*i
                a(f"s_add_u32 s44, s43, {j*65536}")
                a(f"buffer_store_dwordx4 v[{PK}:{PK+3}], v3, s[{SRD_WS}:{SRD_WS+3}], s44 offen offset:{i*512} {st}")

def epi_V(a, st):
    a(f"""
    v_and_b32 v2, 31, v1
    v_lshrrev_b32 v3, 2, v2
    v_and_b32 v3, 3, v3
    v_and_b32 v4, 1, v3
    v_lshrrev_b32 v3, 1, v3
    v_lshl_or_b32 v3, v4, 1, v3            ; swap
    v_lshlrev_b32 v3, 2, v3
    v_and_b32 v4, 3, v2
    v_add_u32 v3, v3, v4
    v_and_b32 v4, 16, v2
    v_add_u32 v3, v3, v4                   ; nsrc
    s_lshr_b32 s40, s{S_W}, 2
    s_lshl_b32 s41, s40, 5
    v_add_u32 v3, s41, v3
    v_lshlrev_b32 v4, 2, v3
    v_add_u32 v4, {L_CS}, v4
    ds_read_b32 v184, v4
    s_sub_u32 s42, s{S_PA}, 20
    s_lshl_b32 s42, s42, 6
    v_add_u32 v3, s42, v3
    v_lshlrev_b32 v3, 5, v3
    v_lshrrev_b32 v4, 5, v1
    v_lshl_add_u32 v3, v4, 4, v3           ; voffset
    s_and_b32 s42, s{S_W}, 3
    s_lshl_b32 s42, s42, 6
    s_add_u32 s43, s42, s{S_T0}
    s_lshr_b32 s43, s43, 4
    s_mul_i32 s43, s43, 20480
    s_add_u32 s43, s43, {OFF_V}
    v_lshlrev_b32 v4, 4, v4
    s_lshl_b32 s42, s42, 2
    v_add_u32 v4, s42, v4
    v_add_u32 v4, {L_M}, v4
    s_waitcnt lgkmcnt(0)
    v_sub_f32 v184, 0, v184                ; -cs
    """)
    for i in range(2):
        for j in range(2):
            o = (32*i + 16*j)*4
            a(f"ds_read_b128 v[188:191], v4 offset:{o}")
            a(f"ds_read_b128 v[192:195], v4 offset:{o + 32}")
            a(f"ds_read_b128 v[196:199], v4 offset:{L_R - L_M + o}")
            a(f"ds_read_b128 v[200:203], v4 offset:{L_R - L_M + o + 32}")
            a("s_waitcnt lgkmcnt(0)")
            acc = ACC + 32*i + 8*j
            for e in range(8):
                a(f"v_fma_f32 v{acc+e}, v{188+e}, v184, v{acc+e}")
            for e in range(8):
                a(f"v_mul_f32 v{acc+e}, v{acc+e}, v{196+e}")
            PK = 216 + 4*(j)
            for e in range(4):
                a(f"v_cvt_pk_bf16_f32 v{PK+e}, v{acc+2*e}, v{acc+2*e+1}")
            a(f"s_add_u32 s44, s43, {(2*i+j)*20480}")
            a(f"buffer_store_dwordx4 v[{PK}:{PK+3}], v3, s[{SRD_WS}:{SRD_WS+3}], s44 offen {st}")

def p1_bulk(a, lo=2, dst=236):
    srd(a, 44, P_WQKV, P_WQKV+1, WQKVB)
    srd(a, 48, P_W1, P_W1+1, W1B)
    nq = -(-(640-64*lo)*30 // 2048); n1 = -(-(640-64*lo)*24 // 2048)
    a(f"""
    s_lshl_b32 s40, s2, 3
    s_add_u32 s40, s40, s3
    v_lshlrev_b32 v2, 7, v1              ; lane*128
    s_mov_b64 exec, {(1 << nq) - 1}
    s_mul_i32 s41, s40, {128*nq}
    s_add_u32 s41, s41, {64*lo*3840}
    buffer_load_dword v{dst+1}, v2, s[44:47], s41 offen
    s_mov_b64 exec, {(1 << n1) - 1}
    s_mul_i32 s41, s40, {128*n1}
    s_add_u32 s41, s41, {64*lo*3072}
    buffer_load_dword v{dst+2}, v2, s[48:51], s41 offen
    s_mov_b64 exec, -1
    """)

def p1_gemm(a, st="", ld="", poll_issue=None, poll_check=None, sigq=None, bulk=True, hooks=None):
    p1_dma(a, 0)
    p1_dma(a, 1)
    nb = 0
    if bulk:
        p1_bulk(a); nb = 2
    a(f"s_waitcnt vmcnt({12 + nb})")
    rowstats_finish(a, st)
    CP = POLLC
    def pre(a, c, rem):
        if hooks and ("pre", c) in hooks:
            a(f"s_waitcnt vmcnt({rem})")
            hooks[("pre", c)](a)
            return None
        if c == CP and poll_check:
            a(f"s_waitcnt vmcnt({rem})")
            poll_check(a)
            return None
        if c == CP + 1: return rem + 3
        if c == 8 and CP < 7:
            a("s_waitcnt vmcnt(0)")
            p1_consts_commit(a)
            a("s_waitcnt lgkmcnt(0)")
            return None
        return rem
    def post(a, c):
        if hooks and ("post", c) in hooks: hooks[("post", c)](a)
        if c == CP - 1 and poll_issue: poll_issue(a)
        if c == CP: p1_consts_issue(a, ld)
    fe = nb + 1
    a(f"""
    s_cmp_eq_u32 s{S_TYPEA}, 2
    s_cbranch_scc1 Lp1_vform
    """)
    p1_mainloop(a, False, pre, post, fe)
    a("s_branch Lp1_epi")
    a("Lp1_vform:")
    p1_mainloop(a, True, pre, post, fe)
    a("Lp1_epi:")
    if not CSTAMP: stamp(a, 3)
    if CP >= 7:
        a("s_waitcnt vmcnt(0)")
        p1_consts_commit(a)
        a("s_waitcnt lgkmcnt(0)")
        a("s_barrier")
    a("s_nop 7")
    a(f"""
    s_cmp_eq_u32 s{S_TYPEA}, 2
    s_cbranch_scc1 Lp1_epiV
    """)
    epi_T(a, 0, False, st)
    a("s_branch Lp1_epiB")
    a("Lp1_epiV:")
    epi_V(a, st)
    a("Lp1_epiB:")
    if not NOST5: stamp(a, 5)
    a(f"""
    s_cmp_eq_u32 s{S_ISH}, 1
    s_cbranch_scc1 Lp1_epiH
    """)
    epi_T(a, 1, False, st)
    if sigq: sigq(a)
    a("s_branch Lp1_done")
    a("Lp1_epiH:")
    epi_T(a, 1, True, st, defer=sigq if sigq else False)
    a("Lp1_done:")
    if not CSTAMP: stamp(a, 6)
```

```python
from common import *
from side import *

LK = 0
LV = 24576
P2_LDS = LV + 32*672 + 512
S_H=12; S_QB=13; S_ODD=14; S_KB0=15
S_O1=16; S_O2=17; S_O3=18; S_TQ=19
SC = 64
OA = 208
QF1 = 224; QF2 = 228
KF = 232
KADDR = 248; KADDR3 = 249; VADDR = 250
MX = 251; TMP = 252; TMP2 = 253
VQA = 254; VQB = 255
PM = 16
PF = 24
RA = 4; RB = 8
VKD = 56; VVD = 57; VONE = 58

def p2_decode(a):
    a(f"""
    s_and_b32 s40, s{S_WG}, 7
    s_lshr_b32 s41, s{S_WG}, 3
    s_and_b32 s42, s41, 3
    s_lshl_b32 s{S_H}, s40, 2
    s_add_u32 s{S_H}, s{S_H}, s42          ; head
    s_lshr_b32 s{S_QB}, s41, 2             ; qb
    s_and_b32 s{S_ODD}, s{S_H}, 1
    s_lshr_b32 s40, s{S_H}, 1
    s_mul_i32 s40, s40, 5
    s_mul_i32 s41, s{S_ODD}, 3
    s_add_u32 s{S_O1}, s41, s40            ; o1
    s_add_u32 s{S_O2}, s{S_O1}, 1          ; o2
    s_add_u32 s{S_O3}, s40, 2              ; o3
    s_lshl_b32 s{S_TQ}, s{S_QB}, 8         ; Tq0
    s_lshl_b32 s{S_KB0}, s{S_QB}, 3
    s_add_u32 s{S_KB0}, s{S_KB0}, s{S_W}
    s_sub_u32 s{S_KB0}, s{S_KB0}, 8
    """)

def p2_setup(a):
    a(f"""
    v_and_b32 v2, 31, v1
    v_lshrrev_b32 v3, 5, v1
    v_lshlrev_b32 v12, 2, v3
    v_sub_u32 v12, v2, v12
    """)
    for r in range(16):
        jj = 8*(r >> 2) + (r & 3)
        a(f"v_cmp_le_i32 s[{20+2*r}:{21+2*r}], {jj}, v12")
    a("v_mov_b32 v14, 0xffff")
    a("v_mov_b32 v15, 0xffff0000")
    for k in range(8):
        a(f"v_cndmask_b32 v12, 0, v14, s[{20+4*k}:{21+4*k}]")
        a(f"v_cndmask_b32 v13, 0, v15, s[{22+4*k}:{23+4*k}]")
        a(f"v_or_b32 v{PM+k}, v12, v13")
    a(f"""
    s_lshl_b32 s54, s{S_W}, 9              ; 32w tokens *16B
    v_lshlrev_b32 v12, 4, v2
    v_add_u32 v12, s54, v12
    v_add_u32 v{KADDR3}, {LK + 16384}, v12
    v_lshl_add_u32 v{KADDR}, v3, 13, v12   ; + hf*8192
    s_mul_i32 s54, s{S_W}, 1344            ; 2w blocks * 672
    v_mul_u32_u24 v12, 336, v3
    v_lshl_add_u32 v12, v2, 4, v12
    v_add_u32 v12, s54, v12
    v_add_u32 v{VADDR}, {LV}, v12
    s_lshl_b32 s54, s{S_W}, 5
    s_add_u32 s54, s54, s{S_TQ}
    v_add_u32 v12, s54, v2
    v_lshlrev_b32 v{VQB}, 4, v12           ; token*16
    v_lshl_add_u32 v{VQA}, v3, 15, v{VQB}  ; + hf*32768 (o2 = o1+1)
    v_lshlrev_b32 v{VKD}, 4, v1
    v_cmp_lt_u32 vcc, 20, v1
    v_subrev_u32 v12, 21, v1
    s_nop 0
    v_cndmask_b32 v12, v1, v12, vcc        ; d
    v_cndmask_b32 v13, 0, 1, vcc           ; hf
    v_lshlrev_b32 v12, 5, v12
    v_lshl_add_u32 v12, v13, 4, v12        ; d*32 + hf*16
    s_mul_i32 s54, s{S_H}, 640
    v_add_u32 v{VVD}, s54, v12
    s_mul_i32 s54, s{S_W}, 672
    v_lshlrev_b32 v12, 4, v1
    v_add_u32 v{VONE}, s54, v12
    v_mov_b32 v12, 0x3f803f80
    v_cmp_gt_u32 vcc, 32, v1
    v_mov_b32 v{RA+1}, 0
    v_mov_b32 v{RA+2}, 0
    v_cndmask_b32 v{RA}, 0, v12, vcc
    v_mov_b32 v{RA+3}, 0
    v_mov_b32 v{RB+1}, 0
    v_mov_b32 v{RB+2}, 0
    v_mov_b32 v{RB+3}, 0
    """)

def p2_ones(a):
    a(f"""
    v_mov_b32 v12, 0x3f803f80
    v_mov_b32 v13, 0x3f803f80
    v_mov_b32 v14, 0x3f803f80
    v_mov_b32 v15, 0x3f803f80
    s_mov_b32 s52, 0x00100000
    s_mov_b32 s53, 0x00000200
    s_mov_b64 exec, s[52:53]
    """)
    for q in range(4):
        a(f"ds_write_b128 v{VONE}, v[12:15] offset:{LV + q*8*672}")
    a("s_mov_b64 exec, -1")

def p2_loads(a, ld=""):
    a(f"""
    s_lshl_b32 s54, s{S_O1}, 15
    s_add_u32 s54, s54, {OFF_QK}
    buffer_load_dwordx4 v[{QF1}:{QF1+3}], v{VQA}, s[{SRD_WS}:{SRD_WS+3}], s54 offen {ld}
    s_lshl_b32 s54, s{S_O3}, 15
    s_add_u32 s54, s54, {OFF_QK}
    buffer_load_dwordx4 v[{QF2}:{QF2+3}], v{VQB}, s[{SRD_WS}:{SRD_WS+3}], s54 offen {ld}
    s_sub_u32 s55, s{S_TQ}, 256
    s_lshl_b32 s54, s{S_W}, 6
    s_add_u32 s55, s55, s54
    s_lshl_b32 s55, s55, 4
    s_add_u32 s55, s55, {OFF_QK + 80*32768}
    s_lshl_b32 s62, s{S_W}, 10             ; seg*1024
    s_cmp_eq_u32 s{S_QB}, 0
    s_cselect_b32 s54, 1, 0
    s_cmp_lt_u32 s{S_W}, 4
    s_cselect_b32 s63, 1, 0
    s_and_b32 s54, s54, s63
    s_cmp_eq_u32 s54, 1
    s_cbranch_scc1 Lp2_skipK
    """)
    for q, so in enumerate((S_O1, S_O2, S_O3)):
        a(f"""
        s_lshl_b32 s54, s{so}, 15
        s_add_u32 s54, s54, s55
        s_add_u32 m0, s62, {LK + q*8192}
        s_nop 0
        buffer_load_dwordx4 v{VKD}, s[{SRD_WS}:{SRD_WS+3}], s54 offen {ld} lds
        """)
    a(f"""
Lp2_skipK:
    s_lshr_b32 s55, s{S_TQ}, 4
    s_sub_u32 s55, s55, 16
    s_add_u32 s55, s55, s{S_W}
    s_mul_i32 s55, s55, 20480
    s_add_u32 s55, s55, {OFF_V}
    s_mul_i32 s62, s{S_W}, 672
    s_mov_b32 s52, 0xffefffff
    s_mov_b32 s53, 0x000001ff
    s_mov_b64 exec, s[52:53]
    s_cmp_eq_u32 s{S_QB}, 0
    s_cbranch_scc1 Lp2_skipV
    """)
    for q in range(4):
        if q == 2: a("Lp2_skipV:")
        a(f"""
        s_add_u32 m0, s62, {LV + q*8*672}
        s_add_u32 s54, s55, {q*8*20480}
        buffer_load_dwordx4 v{VVD}, s[{SRD_WS}:{SRD_WS+3}], s54 offen {ld} lds
        """)
    a("s_mov_b64 exec, -1")

def p2_qfix(a):
    a(f"""
    s_cmp_eq_u32 s{S_ODD}, 0
    s_cbranch_scc1 Lp2_qeven
    v_mov_b32 v{QF2}, 0
    v_mov_b32 v{QF2+1}, 0
    s_branch Lp2_qdone
Lp2_qeven:
    v_mov_b32 v{QF2+2}, 0
    v_mov_b32 v{QF2+3}, 0
Lp2_qdone:
    s_mov_b32 s54, 0
    s_mov_b32 s55, -1
    s_mov_b64 exec, s[54:55]
    v_mov_b32 v{QF2}, 0
    v_mov_b32 v{QF2+1}, 0
    v_mov_b32 v{QF2+2}, 0
    v_mov_b32 v{QF2+3}, 0
    s_mov_b64 exec, -1
    """)

def p2_compute(a, st="", mid=None, inter=None, tail=None, late=None, hooks=None):
    NEG = fhex(-1e30)
    inter = list(inter or [])
    def kread(t, b):
        a(f"ds_read_b128 v[{KF+8*b}:{KF+8*b+3}], v{KADDR} offset:{t*512}")
        a(f"ds_read_b128 v[{KF+8*b+4}:{KF+8*b+7}], v{KADDR3} offset:{t*512}")
    order = [0, 8, 1, 2, 3, 4, 5, 6, 7]
    state = {"first": True}
    def maxblock(t):
        sc = SC + 16*t
        for k in range(0, 16, 4):
            if state["first"]:
                a(f"v_max_f32 v{MX}, v{sc+k}, v{sc+k+1}")
                a(f"v_max_f32 v{TMP}, v{sc+k+2}, v{sc+k+3}")
                state["first"] = False
            else:
                a(f"v_max3_f32 v{MX}, v{MX}, v{sc+k}, v{sc+k+1}")
                a(f"v_max3_f32 v{TMP}, v{TMP}, v{sc+k+2}, v{sc+k+3}")
    kread(order[0], 0)
    for idx, t in enumerate(order):
        b = idx & 1
        if idx + 1 < 9:
            kread(order[idx + 1], b ^ 1)
            a("s_waitcnt lgkmcnt(2)")
        else:
            a("s_waitcnt lgkmcnt(0)")
        sc = SC + 16*t
        L = a.label("qk")
        if t < 8:
            a(f"s_cmp_lt_i32 s{S_KB0}, {-t}")
            a(f"s_cbranch_scc1 {L}_inv")
        a(f"v_mfma_f32_32x32x16_bf16 v[{sc}:{sc+15}], v[{KF+8*b}:{KF+8*b+3}], v[{QF1}:{QF1+3}], 0")
        a(f"v_mfma_f32_32x32x16_bf16 v[{sc}:{sc+15}], v[{KF+8*b+4}:{KF+8*b+7}], v[{QF2}:{QF2+3}], v[{sc}:{sc+15}]")
        if t < 8:
            a(f"s_branch {L}_ok")
            a(f"{L}_inv:")
            for r in range(16):
                a(f"v_mov_b32 v{sc+r}, {NEG}")
            a(f"{L}_ok:")
        if idx == 3:
            a("s_nop 3")
            for r in range(16):
                a(f"v_cndmask_b32 v{SC+r}, v{SC+r}, v{SC+128+r}, s[{20+2*r}:{21+2*r}]")
            maxblock(0)
        elif idx >= 4:
            maxblock(order[idx - 2])
    maxblock(order[7])
    a("s_nop 3")
    maxblock(order[8])
    a(f"v_max_f32 v{MX}, v{MX}, v{TMP}")
    a(f"v_mov_b32 v{TMP}, v{MX}")
    a("s_nop 1")
    a(f"v_permlane32_swap_b32 v{MX}, v{TMP}")
    a("s_nop 1")
    a(f"v_max_f32 v{MX}, v{MX}, v{TMP}")
    a(f"""
    v_and_b32 v{TMP}, 0xffff0000, v{MX}
    v_sub_f32 v{TMP2}, v{MX}, v{TMP}
    v_cvt_pk_bf16_f32 v{RB}, -v{TMP}, -v{TMP2}
    """)
    stamp(a, 5)
    if mid: mid(a)
    a("s_nop 1")
    def R(t):
        sc = SC + 16*t
        a(f"v_mfma_f32_32x32x16_bf16 v[{sc}:{sc+15}], v[{RA}:{RA+3}], v[{RB}:{RB+3}], v[{sc}:{sc+15}]")
    def vread(t, j, dst):
        a(f"ds_read_b128 v[{dst}:{dst+3}], v{VADDR} offset:{(2*t+j)*672}")
    R(0); R(1)
    vread(8, 0, 40); vread(8, 1, 44)
    a("s_nop 7")
    a("s_nop 1")
    for t in range(8):
        sc = SC + 16*t
        if hooks and t in hooks: inter = list(hooks[t](a) or []) + inter
        if t + 2 < 8: R(t + 2)
        vb = 48 if (t & 1) == 0 else 40
        if t == 0:
            vread(0, 0, 48); vread(0, 1, 52)
        for r in range(16):
            a(f"v_exp_f32 v{sc+r}, v{sc+r}")
            if r in (5, 11) and inter: a(inter.pop(0))
        P = PF
        for e in range(8):
            a(f"v_cvt_pk_bf16_f32 v{P+e}, v{sc+2*e}, v{sc+2*e+1}")
        if t == 0:
            for e in range(8):
                a(f"v_and_b32 v{32+e}, v{P+e}, v{PM+e}")
            for e in range(8):
                a(f"v_xor_b32 v{P+e}, v{P+e}, v{32+e}")
            a("s_waitcnt lgkmcnt(2)")
            a(f"v_mfma_f32_32x32x16_bf16 v[{OA}:{OA+15}], v[40:43], v[32:35], 0")
            a(f"v_mfma_f32_32x32x16_bf16 v[{OA}:{OA+15}], v[44:47], v[36:39], v[{OA}:{OA+15}]")
        L = a.label("pv")
        a("s_waitcnt lgkmcnt(0)")
        a(f"s_cmp_lt_i32 s{S_KB0}, {-t}")
        a(f"s_cbranch_scc1 {L}")
        a(f"v_mfma_f32_32x32x16_bf16 v[{OA}:{OA+15}], v[{vb}:{vb+3}], v[{P}:{P+3}], v[{OA}:{OA+15}]")
        a(f"v_mfma_f32_32x32x16_bf16 v[{OA}:{OA+15}], v[{vb+4}:{vb+7}], v[{P+4}:{P+7}], v[{OA}:{OA+15}]")
        a(f"{L}:")
        if t + 1 < 8:
            nb = 48 if ((t + 1) & 1) == 0 else 40
            vread(t + 1, 0, nb); vread(t + 1, 1, nb + 4)
    for g in inter: a(g)
    stamp(a, 6)
    if tail: tail(a)
    a("s_nop 7")
    a("s_nop 7")
    a(f"""
    v_mov_b32 v{TMP}, v{OA+8}
    v_mov_b32 v{TMP2}, v{OA+8}
    s_nop 1
    v_permlane32_swap_b32 v{TMP}, v{TMP2}
    s_nop 1
    v_rcp_f32 v{TMP2}, v{TMP2}
    s_nop 0
    """)
    for r in range(12):
        a(f"v_mul_f32 v{OA+r}, v{OA+r}, v{TMP2}")
    for e in range(6):
        a(f"v_cvt_pk_bf16_f32 v{24+e}, v{OA+2*e}, v{OA+2*e+1}")
    a(f"""
    s_lshl_b32 s54, s{S_H}, 16
    s_add_u32 s54, s54, {OFF_O}
    buffer_store_dwordx4 v[24:27], v{VQA}, s[{SRD_WS}:{SRD_WS+3}], s54 offen {st}
    v_lshrrev_b32 v3, 1, v{VQB}            ; token*8
    s_lshl_b32 s54, s{S_H}, 14
    s_add_u32 s54, s54, {OFF_O4}
    s_mov_b32 s52, -1
    s_mov_b32 s53, 0
    s_mov_b64 exec, s[52:53]
    buffer_store_dwordx2 v[28:29], v3, s[{SRD_WS}:{SRD_WS+3}], s54 offen {st}
    s_mov_b64 exec, -1
    """)

def p2_body(a, st="", ld="", presync=None, postload=None, mid=None, inter=None, tail=None, late=None, split_v=False, hooks=None):
    p2_decode(a)
    p2_setup(a)
    stamp(a, 1)
    if presync: presync(a)
    stamp(a, 2)
    p2_ones(a)
    p2_loads(a, ld)
    if split_v:
        a(f"""
        s_cmp_eq_u32 s{S_QB}, 0
        s_cbranch_scc1 Lp2_wq0
        s_waitcnt vmcnt(4) lgkmcnt(0)
        s_branch Lp2_wq1
Lp2_wq0:
        s_waitcnt vmcnt(2) lgkmcnt(0)
Lp2_wq1:
        """)
    else:
        a("s_waitcnt vmcnt(0) lgkmcnt(0)")
    p2_qfix(a)
    a("s_barrier")
    if postload: postload(a)
    stamp(a, 3)
    p2_compute(a, st, mid, inter, tail, late, hooks)
```

```python
from common import *
from side import *

LB3 = [49152, 90112, 0]
L_RED = 0
P3_LDS = 131072
S_RBK=64; S_CB=65; S_T0_3=66; S_WB=67; S_MW=68; S_AH=69; S_AO4=70
ACC3 = 64
AF = 96
BF = 128
VLANE = 56
VAH = 61
VAO4 = 62
VBR = 12
NSTEP = 68

def p3_decode(a):
    a(f"""
    s_and_b32 s54, s{S_WG}, 7
    s_lshr_b32 s55, s{S_WG}, 3
    s_lshr_b32 s62, s54, 1                 ; RG
    s_and_b32 s63, s54, 1                  ; CG
    s_lshl_b32 s{S_RBK}, s62, 3
    s_and_b32 s62, s55, 7
    s_add_u32 s{S_RBK}, s{S_RBK}, s62
    s_lshr_b32 s62, s55, 3
    s_lshl_b32 s{S_CB}, s63, 2
    s_add_u32 s{S_CB}, s{S_CB}, s62        ; cb
    s_lshl_b32 s{S_T0_3}, s{S_RBK}, 6
    s_mul_i32 s{S_WB}, s{S_CB}, 68
    s_add_u32 s{S_WB}, s{S_WB}, s{S_W}
    s_mul_i32 s{S_WB}, s{S_WB}, 5120
    s_add_u32 s{S_WB}, s{S_WB}, {OFF_W3}
    s_mul_i32 s{S_MW}, s{S_W}, 5120
    s_lshr_b32 s54, s{S_W}, 2              ; kg
    s_lshl_b32 s{S_AH}, s54, 17            ; kg*4*32768
    s_lshl_b32 s{S_AO4}, s54, 17           ; kg*8*16384
    """)

def p3_setup_a(a):
    a(f"""
    s_and_b32 s54, s{S_W}, 3
    s_lshl_b32 s54, s54, 4
    s_add_u32 s54, s54, s{S_T0_3}
    v_and_b32 v2, 15, v1
    v_add_u32 v2, s54, v2                  ; token
    v_lshrrev_b32 v3, 4, v1                ; g
    v_lshlrev_b32 v14, 4, v2
    v_lshl_add_u32 v{VAH}, v3, 15, v14
    v_lshlrev_b32 v14, 3, v2
    v_lshl_add_u32 v{VAO4}, v3, 15, v14    ; g*2 heads*16384
    """)
def p3_setup_b(a):
    a(f"""
    v_lshlrev_b32 v{VLANE}, 4, v1
    s_lshr_b32 s54, s{S_W}, 2
    s_mul_i32 s54, s54, 5120
    v_add_u32 v{VBR}, s54, v{VLANE}
    v_add_u32 v{VBR+1}, 65536, v{VBR}
    """)
def p3_setup(a):
    p3_setup_a(a); p3_setup_b(a)

def p3_aload_str(c, u, ld):
    base = 8*c + 2*u
    if base >= NSTEP: return []
    dst = AF + 4*((c & 1)*4 + u)
    if base < 48:
        return [f"s_add_u32 s54, s{S_AH}, {OFF_H + base*4*32768}\nbuffer_load_dwordx4 v[{dst}:{dst+3}], v{VAH}, s[{SRD_WS}:{SRD_WS+3}], s54 offen {ld}"]
    elif base < 64:
        return [f"s_add_u32 s54, s{S_AH}, {OFF_O + (base-48)*4*32768}\nbuffer_load_dwordx4 v[{dst}:{dst+3}], v{VAH}, s[{SRD_WS}:{SRD_WS+3}], s54 offen {ld}"]
    else:
        return [f"s_add_u32 s54, s{S_AO4}, {OFF_O4 + (base-64)*8*16384}\nbuffer_load_dwordx2 v[{dst}:{dst+1}], v{VAO4}, s[{SRD_WS}:{SRD_WS+3}], s54 offen {ld}\ns_add_u32 s54, s54, 16384\nbuffer_load_dwordx2 v[{dst+2}:{dst+3}], v{VAO4}, s[{SRD_WS}:{SRD_WS+3}], s54 offen {ld}"]

def p3_dmaB_groups(c, ld, vlane):
    g = []
    for ct in range(5):
        g.append(f"s_add_u32 m0, s{S_MW}, {LB3[c%3] + ct*1024}\ns_add_u32 s54, s{S_WB}, {c*8*5120 + ct*1024}\nbuffer_load_dwordx4 v{vlane}, s[{SRD_WS}:{SRD_WS+3}], s54 offen {ld} lds")
    return g

def p3_dmaB(a, c, ld):
    nsteps = min(8, NSTEP - 8*c)
    L = None
    if nsteps < 8:
        L = a.label("p3skip")
        a(f"s_cmp_ge_u32 s{S_W}, {nsteps}")
        a(f"s_cbranch_scc1 {L}")
    for ct in range(5):
        a(f"s_add_u32 m0, s{S_MW}, {LB3[c%3] + ct*1024}")
        a(f"s_add_u32 s40, s{S_WB}, {c*8*5120 + ct*1024}")
        a(f"buffer_load_dwordx4 v{VLANE}, s[{SRD_WS}:{SRD_WS+3}], s40 offen {ld} lds")
    if L:
        a(f"{L}:")

def a_loads_for_step(a, s_expr_base, step, slot, ld):
    pass

def p3_aload(a, c, u, ld):
    base = 8*c + 2*u
    if base >= NSTEP: return 0
    dst = AF + 4*((c & 1)*4 + u)
    if base < 48:
        a(f"s_add_u32 s40, s{S_AH}, {OFF_H + base*4*32768}")
        a(f"buffer_load_dwordx4 v[{dst}:{dst+3}], v{VAH}, s[{SRD_WS}:{SRD_WS+3}], s40 offen {ld}")
        return 1
    elif base < 64:
        a(f"s_add_u32 s40, s{S_AH}, {OFF_O + (base-48)*4*32768}")
        a(f"buffer_load_dwordx4 v[{dst}:{dst+3}], v{VAH}, s[{SRD_WS}:{SRD_WS+3}], s40 offen {ld}")
        return 1
    else:
        a(f"s_add_u32 s40, s{S_AO4}, {OFF_O4 + (base-64)*8*16384}")
        a(f"buffer_load_dwordx2 v[{dst}:{dst+1}], v{VAO4}, s[{SRD_WS}:{SRD_WS+3}], s40 offen {ld}")
        a(f"s_add_u32 s40, s40, 16384")
        a(f"buffer_load_dwordx2 v[{dst+2}:{dst+3}], v{VAO4}, s[{SRD_WS}:{SRD_WS+3}], s40 offen {ld}")
        return 2

def p3_aloads(a, c, ld):
    n = 0
    for u in range(4):
        n += p3_aload(a, c, u, ld)
    return n

def p3_main(a, ld, sync_o=None, post=None, prefetched=False, first_newer=4, early=None):
    NC = 9
    for r in range(20):
        a(f"v_mov_b32 v{ACC3+r}, 0")
    stamp(a, 1)
    if not prefetched:
        for c in (0, 1):
            p3_dmaB(a, c, ld)
            p3_aloads(a, c, ld)
    for c in range(NC):
        if c in (1, 4, 8): stamp(a, {1:3, 4:4, 8:5}[c])
        if c + 1 < NC:
            newer = 4 if c + 1 == 8 else 9
            if c == 0: newer = first_newer if prefetched else 9
            a(f"s_waitcnt vmcnt({newer})")
        else:
            a("s_waitcnt vmcnt(0)")
        a("s_barrier")
        if c == 0: stamp(a, 2)
        if post: post(a, c)
        nxt = c + 2
        if nxt == 6 and sync_o: sync_o(a)
        nsub = 4 if c < 8 else 2
        st = LB3[c % 3]
        bg = []
        Lskip = None
        if nxt < NC:
            if nxt < 8:
                bg = p3_dmaB_groups(nxt, ld, VLANE)
            else:
                p3_dmaB(a, nxt, ld)
        def bread(u, b):
            for ct in range(5):
                off = st + 2*u*5120 + ct*1024
                if off < 65536:
                    a(f"ds_read_b128 v[{BF+20*b+4*ct}:{BF+20*b+4*ct+3}], v{VBR} offset:{off}")
                else:
                    a(f"ds_read_b128 v[{BF+20*b+4*ct}:{BF+20*b+4*ct+3}], v{VBR+1} offset:{off - 65536}")
        bread(0, 0)
        for u in range(nsub):
            b = u & 1
            if u + 1 < nsub:
                bread(u + 1, b ^ 1)
            if u == 0:
                for g in bg[:5]: a(g)
            a("s_waitcnt lgkmcnt(5)" if u + 1 < nsub else "s_waitcnt lgkmcnt(0)")
            af = AF + 4*((c & 1)*4 + u)
            for ct in range(5):
                acc = ACC3 + 4*ct
                a(f"v_mfma_f32_16x16x32_bf16 v[{acc}:{acc+3}], v[{BF+20*b+4*ct}:{BF+20*b+4*ct+3}], v[{af}:{af+3}], v[{acc}:{acc+3}]")
            if nxt < NC:
                for g in p3_aload_str(nxt, u, ld): a(g)
        if nxt < NC and nsub < 4:
            pass
        if early and c == 6: early(a)

def p3_epilogue(a):
    a(f"""
    s_barrier
    s_lshr_b32 s41, s{S_W}, 2
    s_and_b32 s42, s{S_W}, 3
    s_mul_i32 s42, s42, 5120
    v_add_u32 v2, s42, v{VLANE}
    v_add_u32 v2, {LB3[0]}, v2
    s_cmp_eq_u32 s41, 0
    s_cbranch_scc1 Lp3_k0
    s_nop 7
    """)
    for ct in range(5):
        a(f"ds_write_b128 v2, v[{ACC3+4*ct}:{ACC3+4*ct+3}] offset:{ct*1024}")
    a(f"""
    s_waitcnt lgkmcnt(0)
    s_barrier
    s_branch Lp3_end
Lp3_k0:
    """)
    srd(a, 20, P_B2, P_B2+1, B2B)
    srd(a, 24, P_OUT, P_OUT+1, OUTB)
    a(f"""
    s_and_b32 s42, s{S_W}, 3
    s_lshl_b32 s42, s42, 4
    s_add_u32 s42, s42, s{S_T0_3}
    v_and_b32 v3, 15, v1
    v_add_u32 v3, s42, v3
    v_mul_u32_u24 v3, 1280, v3
    v_lshrrev_b32 v4, 4, v1
    v_lshlrev_b32 v4, 3, v4                ; g*8 bytes
    s_mul_i32 s43, s{S_CB}, 160
    v_add_u32 v4, s43, v4
    v_add_u32 v3, v3, v4
    """)
    for ct in range(5):
        a(f"buffer_load_dwordx2 v[{96+2*ct}:{97+2*ct}], v3, s[{SRD_X}:{SRD_X+3}], 0 offen offset:{32*ct}")
        a(f"buffer_load_dwordx2 v[{108+2*ct}:{109+2*ct}], v4, s[20:23], 0 offen offset:{32*ct}")
    a("s_barrier")
    for ct in range(5):
        a(f"ds_read_b128 v[{128+4*ct}:{128+4*ct+3}], v2 offset:{ct*1024}")
    a("s_waitcnt vmcnt(0) lgkmcnt(0)")
    for ct in range(5):
        for r in range(4):
            acc = ACC3 + 4*ct + r
            xr = 96 + 2*ct + (r >> 1); br = 108 + 2*ct + (r >> 1)
            a(f"v_add_f32 v{acc}, v{acc}, v{128+4*ct+r}")
            if r & 1:
                a(f"v_and_b32 v5, 0xffff0000, v{xr}")
                a(f"v_and_b32 v6, 0xffff0000, v{br}")
            else:
                a(f"v_lshlrev_b32 v5, 16, v{xr}")
                a(f"v_lshlrev_b32 v6, 16, v{br}")
            a(f"v_add_f32 v5, v5, v6")
            a(f"v_add_f32 v{acc}, v{acc}, v5")
        a(f"v_cvt_pk_bf16_f32 v{150+2*ct}, v{ACC3+4*ct}, v{ACC3+4*ct+1}")
        a(f"v_cvt_pk_bf16_f32 v{151+2*ct}, v{ACC3+4*ct+2}, v{ACC3+4*ct+3}")
        a(f"buffer_store_dwordx2 v[{150+2*ct}:{151+2*ct}], v3, s[24:27], 0 offen offset:{32*ct}")
    a("Lp3_end:")

def p3_body(a, ld="", presync=None, sync_o=None, post=None):
    p3_decode(a)
    p3_setup(a)
    if presync: presync(a)
    p3_main(a, ld, sync_o, post)
    stamp(a, 6)
    p3_epilogue(a)
```

```python
from common import *

S_WG=2; S_W=3
SRD_WS=4; SRD_X=8
P_X=64; P_WQKV=66; P_WO=68; P_BX=70; P_W1=72; P_B1=74; P_W2=76; P_B2=78; P_OUT=80; P_DBG=82; P_WS=84

def prologue(a):
    a(f"""
    s_load_dwordx16 s[64:79], s[0:1], 0
    s_load_dwordx4 s[80:83], s[0:1], 64
    s_load_dwordx2 s[84:85], s[0:1], 80
    v_lshrrev_b32 v2, 6, v0
    v_and_b32 v1, 63, v0
    s_nop 0
    v_readfirstlane_b32 s{S_W}, v2
    s_waitcnt lgkmcnt(0)
    """)
    srd(a, SRD_WS, P_WS, P_WS+1, WS_USED)
    srd(a, SRD_X, P_X, P_X+1, XB)

def prologue_issue(a):
    a(f"""
    s_load_dwordx16 s[64:79], s[0:1], 0
    s_load_dwordx4 s[80:83], s[0:1], 64
    s_load_dwordx2 s[84:85], s[0:1], 80
    v_lshrrev_b32 v2, 6, v0
    v_and_b32 v1, 63, v0
    s_nop 0
    v_readfirstlane_b32 s{S_W}, v2
    """)
def prologue_wait(a):
    a("s_waitcnt lgkmcnt(0)")
    srd(a, SRD_WS, P_WS, P_WS+1, WS_USED)
    srd(a, SRD_X, P_X, P_X+1, XB)

def dpp_reduce16(a, v, tmp=None):
    for r in (8, 4, 2, 1):
        a(f"s_nop 1")
        a(f"v_add_f32_dpp v{v}, v{v}, v{v} row_ror:{r} row_mask:0xf bank_mask:0xf")

def side_stats(a, SID, st=""):
    L = a.label("stats_end")
    a(f"""
    s_cmp_lt_u32 s{SID}, 8
    s_cbranch_scc1 {L}
    s_sub_u32 s13, s{SID}, 8
    s_lshl_b32 s13, s13, 6
    s_lshl_b32 s14, s{S_W}, 3
    s_add_u32 s13, s13, s14            ; R0
    s_mul_i32 s14, s13, 1280
    v_lshrrev_b32 v2, 4, v1            ; rg
    v_and_b32 v3, 15, v1               ; i
    v_mul_u32_u24 v4, 1280, v2
    v_lshl_add_u32 v4, v3, 4, v4
    v_add_u32 v4, s14, v4
    v_add_u32 v5, 5120, v4
    """)
    for g in range(2):
        for c in range(5):
            a(f"buffer_load_dwordx4 v[{16+20*g+4*c}:{19+20*g+4*c}], v{4+g}, s[{SRD_X}:{SRD_X+3}], 0 offen offset:{c*256}")
    a(f"""
    s_mov_b32 s15, {fhex(1.0/640)}
    s_mov_b32 s16, {fhex(EPS)}
    s_mov_b32 s17, {fhex(QSCALE)}
    """)
    for g in range(2):
        a(f"s_waitcnt vmcnt({5 if g == 0 else 0})")
        for k in range(20):
            a(f"v_lshlrev_b32 v{64+2*k}, 16, v{16+20*g+k}")
            a(f"v_and_b32 v{65+2*k}, 0xffff0000, v{16+20*g+k}")
        a("v_add_f32 v6, v64, v65")
        a("v_add_f32 v7, v66, v67")
        for k in range(2, 20, 2):
            a(f"v_add_f32 v6, v6, v{64+2*k}")
            a(f"v_add_f32 v7, v7, v{66+2*k}")
            a(f"v_add_f32 v6, v6, v{65+2*k}")
            a(f"v_add_f32 v7, v7, v{67+2*k}")
        a("v_add_f32 v6, v6, v7")
        dpp_reduce16(a, 6)
        a("v_mul_f32 v8, s15, v6")
        for k in range(40):
            a(f"v_sub_f32 v{64+k}, v{64+k}, v8")
        a("v_mul_f32 v6, v64, v64")
        a("v_mul_f32 v7, v65, v65")
        for k in range(2, 40, 2):
            a(f"v_fmac_f32 v6, v{64+k}, v{64+k}")
            a(f"v_fmac_f32 v7, v{65+k}, v{65+k}")
        a("v_add_f32 v6, v6, v7")
        dpp_reduce16(a, 6)
        a(f"""
        v_mul_f32 v6, s15, v6              ; var
        v_add_f32 v7, s16, v6
        v_rsq_f32 v9, v7                   ; r1
        s_nop 0
        v_mul_f32 v7, v9, v9
        v_mul_f32 v7, v7, v6               ; v2 = var*r1^2
        v_add_f32 v7, s16, v7
        v_rsq_f32 v7, v7                   ; r2
        s_nop 0
        v_mul_f32 v10, v9, v7              ; r12
        v_mul_f32 v11, s17, v9             ; r1c
        """)
        a(f"""
        v_add_u32 v12, {4*g}, v2
        v_add_u32 v12, s13, v12
        v_lshlrev_b32 v12, 4, v12
        v_cmp_eq_u32 vcc, 0, v3
        s_and_saveexec_b64 s[18:19], vcc
        buffer_store_dwordx4 v[8:11], v12, s[{SRD_WS}:{SRD_WS+3}], 0 offen offset:{OFF_STATS} {st}
        s_mov_b64 exec, s[18:19]
        s_nop 1
        """)
    a(f"{L}:")

def side_cs(a, SID, st=""):
    L = a.label("cs_end")
    a(f"""
    s_cmp_ge_u32 s{SID}, 27
    s_cbranch_scc1 {L}
    s_cmp_lt_u32 s{SID}, 15
    s_cselect_b32 s20, s{P_WQKV}, s{P_W1}
    s_cselect_b32 s21, s{P_WQKV+1}, s{P_W1+1}
    s_mov_b32 s22, {W1B}
    s_cselect_b32 s22, {WQKVB}, s22
    s_movk_i32 s14, 3072
    s_cselect_b32 s14, 3840, s14           ; stride
    s_cselect_b32 s15, 0, 15
    s_and_b32 s21, s21, 0xffff
    s_mov_b32 s23, 0x20000
    s_sub_u32 s15, s{SID}, s15
    s_lshl_b32 s15, s15, 8
    s_mul_i32 s16, s{S_W}, 80
    s_mul_i32 s16, s16, s14
    s_add_u32 s16, s16, s15
    v_lshrrev_b32 v2, 4, v1                ; rg
    v_and_b32 v3, 15, v1                   ; i
    v_mul_lo_u32 v4, v2, s14
    v_lshl_add_u32 v4, v3, 4, v4
    v_add_u32 v4, s16, v4
    s_lshl_b32 s17, s14, 2
    s_mov_b32 s18, 0
    """)
    for k in range(20):
        a(f"buffer_load_dwordx4 v[{16+4*k}:{19+4*k}], v4, s[20:23], s18 offen")
        a(f"s_add_u32 s18, s18, s17")
    for j in range(8):
        a(f"v_mov_b32 v{100+j}, 0")
    for k in range(20):
        a(f"s_waitcnt vmcnt({19-k})")
        for j in range(4):
            a(f"v_lshlrev_b32 v6, 16, v{16+4*k+j}")
            a(f"v_and_b32 v7, 0xffff0000, v{16+4*k+j}")
            a(f"v_add_f32 v{100+2*j}, v{100+2*j}, v6")
            a(f"v_add_f32 v{101+2*j}, v{101+2*j}, v7")
    a(f"""
    s_lshl_b32 s16, s{S_W}, 2
    v_add_u32 v5, s16, v2
    v_lshlrev_b32 v5, 9, v5
    v_lshl_add_u32 v5, v3, 5, v5
    ds_write_b128 v5, v[100:103]
    ds_write_b128 v5, v[104:107] offset:16
    s_waitcnt lgkmcnt(0)
    s_barrier
    s_cmp_ge_u32 s{S_W}, 2
    s_cbranch_scc1 {L}_skip
    v_lshlrev_b32 v5, 2, v0
    """)
    for k in range(32):
        a(f"ds_read_b32 v{16+k}, v5 offset:{k*512}")
    a("s_waitcnt lgkmcnt(0)")
    for k in range(1, 32):
        a(f"v_add_f32 v16, v16, v{16+k}")
    a(f"""
    s_lshl_b32 s16, s{SID}, 9
    v_add_u32 v5, s16, v5
    s_mov_b32 s16, {OFF_CS}
    buffer_store_dword v16, v5, s[{SRD_WS}:{SRD_WS+3}], s16 offen {st}
{L}_skip:
    s_barrier
{L}:
    """)


def side_loads(a, SID):
    L = a.label("sl")
    a(f"""
    v_lshrrev_b32 v2, 4, v1            ; rg
    v_and_b32 v3, 15, v1               ; i
    s_cmp_lt_u32 s{SID}, 8
    s_cbranch_scc1 {L}_nost
    s_sub_u32 s13, s{SID}, 8
    s_lshl_b32 s13, s13, 6
    s_lshl_b32 s14, s{S_W}, 3
    s_add_u32 s13, s13, s14            ; R0
    s_mul_i32 s14, s13, 1280
    v_mul_u32_u24 v4, 1280, v2
    v_lshl_add_u32 v4, v3, 4, v4
    v_add_u32 v4, s14, v4
    v_add_u32 v5, 5120, v4
    """)
    for g in range(2):
        for c in range(5):
            a(f"buffer_load_dwordx4 v[{16+20*g+4*c}:{19+20*g+4*c}], v{4+g}, s[{SRD_X}:{SRD_X+3}], 0 offen offset:{c*256}")
    a(f"""
{L}_nost:
    s_cmp_ge_u32 s{SID}, 27
    s_cbranch_scc1 {L}_nocs
    s_cmp_lt_u32 s{SID}, 15
    s_cselect_b32 s20, s{P_WQKV}, s{P_W1}
    s_cselect_b32 s21, s{P_WQKV+1}, s{P_W1+1}
    s_mov_b32 s22, {W1B}
    s_cselect_b32 s22, {WQKVB}, s22
    s_movk_i32 s14, 3072
    s_cselect_b32 s14, 3840, s14           ; stride
    s_cselect_b32 s15, 0, 15
    s_and_b32 s21, s21, 0xffff
    s_mov_b32 s23, 0x20000
    s_sub_u32 s15, s{SID}, s15
    s_lshl_b32 s15, s15, 8
    s_mul_i32 s16, s{S_W}, 80
    s_mul_i32 s16, s16, s14
    s_add_u32 s16, s16, s15
    v_mul_lo_u32 v4, v2, s14
    v_lshl_add_u32 v4, v3, 4, v4
    v_add_u32 v4, s16, v4
    s_lshl_b32 s17, s14, 2
    s_mov_b32 s18, 0
    """)
    for k in range(20):
        a(f"buffer_load_dwordx4 v[{128+4*k}:{131+4*k}], v4, s[20:23], s18 offen")
        a(f"s_add_u32 s18, s18, s17")
    a(f"{L}_nocs:")

def side_stats2(a, SID, st=""):
    L = a.label("st2")
    a(f"""
    s_cmp_lt_u32 s{SID}, 8
    s_cbranch_scc1 {L}
    s_mov_b32 s24, {fhex(1.0/640)}
    s_mov_b32 s25, {fhex(EPS)}
    s_mov_b32 s26, {fhex(QSCALE)}
    s_cmp_ge_u32 s{SID}, 27
    s_cbranch_scc1 {L}_w0
    s_waitcnt vmcnt(20)
    s_branch {L}_w1
{L}_w0:
    s_waitcnt vmcnt(0)
{L}_w1:
    """)
    for g in range(2):
        U = 64
        for k in range(20):
            a(f"v_lshlrev_b32 v{U+2*k}, 16, v{16+20*g+k}")
            a(f"v_and_b32 v{U+2*k+1}, 0xffff0000, v{16+20*g+k}")
        a(f"v_pk_add_f32 v[6:7], v[{U}:{U+1}], v[{U+2}:{U+3}]")
        a(f"v_pk_add_f32 v[8:9], v[{U+4}:{U+5}], v[{U+6}:{U+7}]")
        for k in range(4, 20, 2):
            a(f"v_pk_add_f32 v[6:7], v[6:7], v[{U+2*k}:{U+2*k+1}]")
            a(f"v_pk_add_f32 v[8:9], v[8:9], v[{U+2*k+2}:{U+2*k+3}]")
        a("v_pk_add_f32 v[6:7], v[6:7], v[8:9]")
        a("v_add_f32 v6, v6, v7")
        dpp_reduce16(a, 6)
        a("v_mul_f32 v8, s24, v6")
        a("v_sub_f32 v10, 0, v8")
        a("v_mov_b32 v11, v10")
        for k in range(20):
            a(f"v_pk_add_f32 v[{U+2*k}:{U+2*k+1}], v[{U+2*k}:{U+2*k+1}], v[10:11]")
        a(f"v_pk_mul_f32 v[6:7], v[{U}:{U+1}], v[{U}:{U+1}]")
        a(f"v_pk_mul_f32 v[12:13], v[{U+2}:{U+3}], v[{U+2}:{U+3}]")
        for k in range(2, 20, 2):
            a(f"v_pk_fma_f32 v[6:7], v[{U+2*k}:{U+2*k+1}], v[{U+2*k}:{U+2*k+1}], v[6:7]")
            a(f"v_pk_fma_f32 v[12:13], v[{U+2*k+2}:{U+2*k+3}], v[{U+2*k+2}:{U+2*k+3}], v[12:13]")
        a("v_pk_add_f32 v[6:7], v[6:7], v[12:13]")
        a("v_add_f32 v6, v6, v7")
        dpp_reduce16(a, 6)
        a(f"""
        v_mul_f32 v6, s24, v6              ; var
        v_add_f32 v7, s25, v6
        v_rsq_f32 v9, v7                   ; r1
        s_nop 0
        v_mul_f32 v7, v9, v9
        v_mul_f32 v7, v7, v6               ; v2 = var*r1^2
        v_add_f32 v7, s25, v7
        v_rsq_f32 v7, v7                   ; r2
        s_nop 0
        v_mul_f32 v10, v9, v7              ; r12
        v_mul_f32 v11, s26, v9             ; r1c
        v_add_u32 v12, {4*g}, v2
        v_add_u32 v12, s13, v12
        v_lshlrev_b32 v12, 4, v12
        v_cmp_eq_u32 vcc, 0, v3
        s_and_saveexec_b64 s[18:19], vcc
        buffer_store_dwordx4 v[8:11], v12, s[{SRD_WS}:{SRD_WS+3}], 0 offen offset:{OFF_STATS} {st}
        s_mov_b64 exec, s[18:19]
        s_nop 1
        """)
    a(f"{L}:")

def side_cs2(a, SID, st=""):
    L = a.label("cs2")
    a(f"""
    s_cmp_ge_u32 s{SID}, 27
    s_cbranch_scc1 {L}
    """)
    for j in range(8):
        a(f"v_mov_b32 v{100+j}, 0")
    a("s_waitcnt vmcnt(0)")
    for k in range(20):
        for j in range(4):
            a(f"v_lshlrev_b32 v6, 16, v{128+4*k+j}")
            a(f"v_and_b32 v7, 0xffff0000, v{128+4*k+j}")
            a(f"v_pk_add_f32 v[{100+2*j}:{101+2*j}], v[{100+2*j}:{101+2*j}], v[6:7]")
    a(f"""
    s_lshl_b32 s16, s{S_W}, 2
    v_add_u32 v5, s16, v2
    v_lshlrev_b32 v5, 9, v5
    v_lshl_add_u32 v5, v3, 5, v5
    ds_write_b128 v5, v[100:103]
    ds_write_b128 v5, v[104:107] offset:16
    s_waitcnt lgkmcnt(0)
    s_barrier
    s_cmp_ge_u32 s{S_W}, 2
    s_cbranch_scc1 {L}_skip
    v_lshlrev_b32 v5, 2, v0
    """)
    for k in range(32):
        a(f"ds_read_b32 v{16+k}, v5 offset:{k*512}")
    a("s_waitcnt lgkmcnt(0)")
    for k in range(0, 32, 2):
        if k == 0: a(f"v_add_f32 v16, v16, v17")
        else: a(f"v_add3_u32 v48, v48, v48, v48") if False else (a(f"v_add_f32 v16, v16, v{16+k}"), a(f"v_add_f32 v16, v16, v{17+k}"))
    a(f"""
    s_lshl_b32 s16, s{SID}, 9
    v_add_u32 v5, s16, v5
    s_mov_b32 s16, {OFF_CS}
    buffer_store_dword v16, v5, s[{SRD_WS}:{SRD_WS+3}], s16 offen {st}
{L}_skip:
    s_barrier
{L}:
    """)


RS = 208
def rowstats_issue(a):
    a(f"""
    s_lshl_b32 s40, s{S_WG}, 3
    s_add_u32 s40, s40, s{S_W}             ; row
    s_mul_i32 s41, s40, 1280
    v_lshlrev_b32 v2, 5, v1                ; lane*32
    """)
    for k in range(8): a(f"v_mov_b32 v{RS+k}, 0")
    a(f"""
    s_mov_b32 s42, -1
    s_mov_b32 s43, 0xff
    s_mov_b64 exec, s[42:43]
    buffer_load_dwordx4 v[{RS}:{RS+3}], v2, s[{SRD_X}:{SRD_X+3}], s41 offen
    buffer_load_dwordx4 v[{RS+4}:{RS+7}], v2, s[{SRD_X}:{SRD_X+3}], s41 offen offset:16
    s_mov_b64 exec, -1
    """)

def wave_sum(a, v, t):
    dpp_reduce16(a, v)
    a(f"""
    s_nop 0
    v_readlane_b32 s44, v{v}, 0
    v_readlane_b32 s45, v{v}, 16
    v_readlane_b32 s46, v{v}, 32
    v_readlane_b32 s47, v{v}, 48
    s_nop 1
    v_mov_b32 v{v}, s44
    v_add_f32 v{v}, s45, v{v}
    v_add_f32 v{v}, s46, v{v}
    v_add_f32 v{v}, s47, v{v}
    """)

def rowstats_finish(a, st=""):
    U = 216
    for k in range(8):
        a(f"v_lshlrev_b32 v{U+2*k}, 16, v{RS+k}")
        a(f"v_and_b32 v{U+2*k+1}, 0xffff0000, v{RS+k}")
    a(f"v_pk_add_f32 v[6:7], v[{U}:{U+1}], v[{U+2}:{U+3}]")
    a(f"v_pk_add_f32 v[8:9], v[{U+4}:{U+5}], v[{U+6}:{U+7}]")
    a(f"v_pk_add_f32 v[10:11], v[{U+8}:{U+9}], v[{U+10}:{U+11}]")
    a(f"v_pk_add_f32 v[12:13], v[{U+12}:{U+13}], v[{U+14}:{U+15}]")
    a("v_pk_add_f32 v[6:7], v[6:7], v[8:9]")
    a("v_pk_add_f32 v[10:11], v[10:11], v[12:13]")
    a("v_pk_add_f32 v[6:7], v[6:7], v[10:11]")
    a("v_add_f32 v6, v6, v7")
    wave_sum(a, 6, 7)
    a(f"""
    v_mul_f32 v8, {fhex(1.0/640)}, v6        ; mean
    v_cmp_gt_u32 vcc, 40, v1
    v_sub_f32 v10, 0, v8
    s_nop 0
    v_cndmask_b32 v10, 0, v10, vcc
    v_mov_b32 v11, v10
    """)
    for k in range(8):
        a(f"v_pk_add_f32 v[{U+2*k}:{U+2*k+1}], v[{U+2*k}:{U+2*k+1}], v[10:11]")
    a(f"v_pk_mul_f32 v[6:7], v[{U}:{U+1}], v[{U}:{U+1}]")
    a(f"v_pk_mul_f32 v[12:13], v[{U+2}:{U+3}], v[{U+2}:{U+3}]")
    for k in range(2, 8, 2):
        a(f"v_pk_fma_f32 v[6:7], v[{U+2*k}:{U+2*k+1}], v[{U+2*k}:{U+2*k+1}], v[6:7]")
        a(f"v_pk_fma_f32 v[12:13], v[{U+2*k+2}:{U+2*k+3}], v[{U+2*k+2}:{U+2*k+3}], v[12:13]")
    a("v_pk_add_f32 v[6:7], v[6:7], v[12:13]")
    a("v_add_f32 v6, v6, v7")
    wave_sum(a, 6, 7)
    a(f"""
    v_mul_f32 v6, {fhex(1.0/640)}, v6        ; var
    v_add_f32 v7, {fhex(EPS)}, v6
    v_rsq_f32 v9, v7                         ; r1
    s_nop 0
    v_mul_f32 v7, v9, v9
    v_mul_f32 v7, v7, v6
    v_add_f32 v7, {fhex(EPS)}, v7
    v_rsq_f32 v7, v7                         ; r2
    s_nop 0
    v_mul_f32 v10, v9, v7                    ; r12
    v_mul_f32 v11, {fhex(QSCALE)}, v9        ; r1c
    s_lshl_b32 s40, s{S_WG}, 3
    s_add_u32 s40, s40, s{S_W}
    s_lshl_b32 s40, s40, 4
    v_mov_b32 v12, 0
    s_mov_b64 exec, 1
    buffer_store_dwordx4 v[8:11], v12, s[{SRD_WS}:{SRD_WS+3}], s40 offen offset:{OFF_STATS} {st}
    s_mov_b64 exec, -1
    """)

def side_cs_loads(a, SID):
    L = a.label("sl")
    a(f"""
    v_lshrrev_b32 v2, 4, v1            ; rg
    v_and_b32 v3, 15, v1               ; i
    s_cmp_ge_u32 s{SID}, 27
    s_cbranch_scc1 {L}_nocs
    s_cmp_lt_u32 s{SID}, 15
    s_cselect_b32 s20, s{P_WQKV}, s{P_W1}
    s_cselect_b32 s21, s{P_WQKV+1}, s{P_W1+1}
    s_mov_b32 s22, {W1B}
    s_cselect_b32 s22, {WQKVB}, s22
    s_movk_i32 s14, 3072
    s_cselect_b32 s14, 3840, s14           ; stride
    s_cselect_b32 s15, 0, 15
    s_and_b32 s21, s21, 0xffff
    s_mov_b32 s23, 0x20000
    s_sub_u32 s15, s{SID}, s15
    s_lshl_b32 s15, s15, 8
    s_mul_i32 s16, s{S_W}, 80
    s_mul_i32 s16, s16, s14
    s_add_u32 s16, s16, s15
    v_mul_lo_u32 v4, v2, s14
    v_lshl_add_u32 v4, v3, 4, v4
    v_add_u32 v4, s16, v4
    s_lshl_b32 s17, s14, 2
    s_mov_b32 s18, 0
    """)
    for k in range(20):
        a(f"buffer_load_dwordx4 v[{128+4*k}:{131+4*k}], v4, s[20:23], s18 offen")
        a(f"s_add_u32 s18, s18, s17")
    a(f"{L}_nocs:")

def side_w3_step(a, SSTEP, st=""):
    a(f"""
    s_cmp_lt_u32 s{SSTEP}, 48
    s_cselect_b32 s20, s{P_W2}, s{P_WO}
    s_cselect_b32 s21, s{P_W2+1}, s{P_WO+1}
    s_mov_b32 s22, {WOB}
    s_cselect_b32 s22, {W2B}, s22
    s_and_b32 s21, s21, 0xffff
    s_mov_b32 s23, 0x20000
    """)
    Lo = a.label("w3")
    for q in range(5):
        a(f"""
        s_mul_i32 s14, s{S_W}, 320
        s_add_u32 s14, s14, {64*q}
        v_add_u32 v2, s14, v1              ; P
        v_mul_u32_u24 v3, 52429, v2
        v_lshrrev_b32 v3, 22, v3           ; j = P/80  (P<2560)
        v_mul_u32_u24 v4, 80, v3
        v_sub_u32 v4, v2, v4               ; p
        v_and_b32 v5, 3, v3
        v_lshrrev_b32 v6, 3, v3            ; g
        v_and_b32 v7, 1, v6
        v_lshl_or_b32 v5, v7, 2, v5        ; h(j)
        v_lshlrev_b32 v5, 1, v5
        v_xor_b32 v4, v4, v5
        v_and_b32 v8, 7, v3                ; e
        """)
        a(f"""
        s_cmp_lt_u32 s{SSTEP}, 48
        s_cbranch_scc1 {Lo}_a{q}
        s_cmp_lt_u32 s{SSTEP}, 64
        s_cbranch_scc1 {Lo}_b{q}
        s_sub_u32 s15, s{SSTEP}, 64
        s_lshl_b32 s15, s15, 3
        v_lshrrev_b32 v9, 2, v8
        v_lshl_add_u32 v9, v6, 1, v9
        v_add_u32 v9, s15, v9              ; head
        v_and_b32 v10, 3, v8
        v_add_u32 v10, 16, v10             ; d
        v_mul_u32_u24 v9, 20, v9
        v_add_u32 v9, v9, v10              ; row
        s_branch {Lo}_c{q}
{Lo}_b{q}:
        s_sub_u32 s15, s{SSTEP}, 48
        s_lshl_b32 s15, s15, 1
        v_lshrrev_b32 v9, 1, v6
        v_add_u32 v9, s15, v9              ; head
        v_and_b32 v10, 3, v8
        v_lshl_add_u32 v10, v7, 2, v10
        v_lshrrev_b32 v11, 2, v8
        v_lshl_add_u32 v10, v11, 3, v10    ; d
        v_mul_u32_u24 v9, 20, v9
        v_add_u32 v9, v9, v10
        s_branch {Lo}_c{q}
{Lo}_a{q}:
        s_lshl_b32 s15, s{SSTEP}, 5
        v_add_u32 v9, s15, v3
{Lo}_c{q}:
        v_mul_u32_u24 v9, 1280, v9
        v_lshl_add_u32 v9, v4, 4, v9
        s_lshl_b32 s14, s14, 4
        s_mov_b32 m0, s14
        s_nop 0
        buffer_load_dwordx4 v9, s[20:23], 0 offen lds
        """)
    a(f"""
    s_waitcnt vmcnt(0)
    s_barrier
    v_lshrrev_b32 v2, 4, v1                ; g
    v_and_b32 v3, 15, v1                   ; i
    v_lshrrev_b32 v4, 2, v3
    v_lshl_add_u32 v4, v2, 3, v4           ; j
    v_and_b32 v5, 3, v4
    v_and_b32 v6, 1, v2
    v_lshl_or_b32 v5, v6, 2, v5            ; h(j)
    v_lshlrev_b32 v5, 5, v5                ; 2h * 16 bytes
    v_mul_u32_u24 v4, 1280, v4
    v_and_b32 v6, 3, v3                    ; c4
    v_lshlrev_b32 v6, 3, v6
    s_mul_i32 s14, s{S_W}, 160
    """)
    for ct in range(5):
        a(f"""
        s_add_u32 s15, s14, {32*ct}
        v_add_u32 v7, s15, v6
        v_xor_b32 v7, v7, v5
        v_add_u32 v7, v7, v4
        ds_read_b64_tr_b16 v[{16+4*ct}:{17+4*ct}], v7
        ds_read_b64_tr_b16 v[{18+4*ct}:{19+4*ct}], v7 offset:5120
        """)
    a(f"""
    s_mul_i32 s14, s{S_W}, 68
    s_add_u32 s14, s14, s{SSTEP}
    s_mul_i32 s14, s14, 5120
    s_add_u32 s14, s14, {OFF_W3}
    v_lshlrev_b32 v8, 4, v1
    s_waitcnt lgkmcnt(0)
    """)
    for ct in range(5):
        if ct == 4: a("s_add_u32 s14, s14, 4096")
        a(f"buffer_store_dwordx4 v[{16+4*ct}:{19+4*ct}], v8, s[{SRD_WS}:{SRD_WS+3}], s14 offen offset:{1024*(ct%4)} {st}")
    a("s_barrier")

def side_all(a, SID, st=""):
    side_stats(a, SID, st)
    side_cs(a, SID, st)
    a(f"s_mov_b32 s30, s{SID}")
    side_w3_step(a, 30, st)
    L = a.label("w3_2")
    a(f"""
    s_add_u32 s30, s{SID}, 40
    s_cmp_ge_u32 s30, 68
    s_cbranch_scc1 {L}
    """)
    side_w3_step(a, 30, st)
    a(f"{L}:")
```

```python
from common import *
from side import *
OFF_SEED = OFF_FLAGS
FA = OFF_FLAGS + 0x1000
FS = OFF_FLAGS + 0x9000
FB = OFF_FLAGS + 0x2000
FQ = OFF_FLAGS + 0x3000
FH = OFF_FLAGS + 0x5000
FO = OFF_FLAGS + 0x7000
S_TAG = 60
SRD_DBG = 56
V_TAGLD = 255
SPIN = 1 << 16

def tag_boot(a):
    L = a.label("boot")
    a(f"""
    s_cmp_lg_u32 s{S_W}, 0
    s_cbranch_scc1 {L}_end
    v_mov_b32 v8, 0
    s_cmp_lg_u32 s{S_WG}, 255
    s_cbranch_scc1 {L}_end
    s_mov_b32 s40, {OFF_SEED}
    buffer_load_dword v9, v8, s[{SRD_WS}:{SRD_WS+3}], s40 offen sc1
    s_waitcnt vmcnt(0)
    v_add_u32 v9, 0x9e3779b8, v9
    v_or_b32 v9, 1, v9
    buffer_store_dword v9, v8, s[{SRD_DBG}:{SRD_DBG+3}], 0 offen sc1
    buffer_store_dword v9, v8, s[{SRD_WS}:{SRD_WS+3}], s40 offen sc1
    s_nop 0
    v_readfirstlane_b32 s{S_TAG}, v9
{L}_end:
    """)

def get_tag(a, vt=2):
    L = a.label("tag")
    a(f"""
    s_cmp_lg_u32 s{S_TAG}, 0
    s_cbranch_scc1 {L}_ok
    s_mov_b32 s61, {SPIN}
    v_mov_b32 v{vt}, 0
{L}_loop:
    buffer_load_dword v{vt+1}, v{vt}, s[{SRD_DBG}:{SRD_DBG+3}], 0 offen sc1
    s_waitcnt vmcnt(0)
    v_readfirstlane_b32 s{S_TAG}, v{vt+1}
    s_nop 3
    s_cmp_lg_u32 s{S_TAG}, 0
    s_cbranch_scc1 {L}_ok
    s_sleep 2
    s_sub_u32 s61, s61, 1
    s_cmp_lg_u32 s61, 0
    s_cbranch_scc1 {L}_loop
{L}_ok:
    """)

def poll(a, base_sgpr_or_imm, n, vt=2, extra=None):
    L = a.label("poll")
    a(f"s_mov_b32 s62, {base_sgpr_or_imm}")
    a(f"v_lshlrev_b32 v{vt}, 4, v1")
    tot = n
    if extra:
        b2, n2 = extra
        a(f"s_sub_u32 s63, {b2}, {n*16}")
        a(f"v_add_u32 v{vt+1}, s63, v{vt}")
        a(f"v_add_u32 v{vt}, s62, v{vt}")
        a(f"v_cmp_le_u32 vcc, {n}, v1")
        a(f"s_nop 1")
        a(f"v_cndmask_b32 v{vt}, v{vt}, v{vt+1}, vcc")
        tot = n + n2
    else:
        a(f"v_add_u32 v{vt}, s62, v{vt}")
    a(f"""
    v_cmp_gt_u32 vcc, {tot}, v1
    s_and_saveexec_b64 s[52:53], vcc
    s_mov_b32 s61, {SPIN}
{L}_loop:
    buffer_load_dword v{vt+1}, v{vt}, s[{SRD_WS}:{SRD_WS+3}], 0 offen sc1
    s_waitcnt vmcnt(0)
    v_cmp_ne_u32 vcc, s{S_TAG}, v{vt+1}
    s_nop 4
    s_cmp_eq_u64 vcc, 0
    s_cbranch_scc1 {L}_done
    s_sleep 1
    s_sub_u32 s61, s61, 1
    s_cmp_lg_u32 s61, 0
    s_cbranch_scc1 {L}_loop
{L}_done:
    s_mov_b64 exec, s[52:53]
    """)

def signal(a, soff, vt=2):
    a(f"""
    v_mov_b32 v{vt}, 0
    v_mov_b32 v{vt+1}, s{S_TAG}
    s_mov_b64 s[52:53], exec
    s_mov_b64 exec, 1
    buffer_store_dword v{vt+1}, v{vt}, s[{SRD_WS}:{SRD_WS+3}], {soff} offen sc1
    s_mov_b64 exec, s[52:53]
    """)

class W0:
    def __init__(self, a): self.a = a
    def __enter__(self):
        self.L = self.a.label("w0")
        self.a(f"s_cmp_lg_u32 s{S_W}, 0")
        self.a(f"s_cbranch_scc1 {self.L}")
    def __exit__(self, *e):
        self.a(f"{self.L}:")

def poll_issue(a, base, n, vaddr, vdata):
    a(f"v_lshlrev_b32 v{vaddr}, 4, v1")
    a(f"v_add_u32 v{vaddr}, {base}, v{vaddr}")
    a(f"buffer_load_dword v{vdata}, v{vaddr}, s[{SRD_WS}:{SRD_WS+3}], 0 offen sc1")

def poll_finish(a, n, vaddr, vdata):
    L = a.label("pf")
    a(f"""
    v_cmp_gt_u32 vcc, {n}, v1
    s_and_saveexec_b64 s[52:53], vcc
    s_mov_b32 s61, {SPIN}
{L}_loop:
    v_cmp_ne_u32 vcc, s{S_TAG}, v{vdata}
    s_nop 4
    s_cmp_eq_u64 vcc, 0
    s_cbranch_scc1 {L}_done
    s_sleep 1
    buffer_load_dword v{vdata}, v{vaddr}, s[{SRD_WS}:{SRD_WS+3}], 0 offen sc1
    s_waitcnt vmcnt(0)
    s_sub_u32 s61, s61, 1
    s_cmp_lg_u32 s61, 0
    s_cbranch_scc1 {L}_loop
{L}_done:
    s_mov_b64 exec, s[52:53]
    """)

def tag_issue(a, vdata):
    a(f"v_mov_b32 v{vdata}, 0")
    a(f"buffer_load_dword v{vdata}, v{vdata}, s[{SRD_DBG}:{SRD_DBG+3}], 0 offen sc1")
def tag_finish(a, vdata):
    L = a.label("tf")
    a(f"""
    s_cmp_lg_u32 s{S_TAG}, 0
    s_cbranch_scc1 {L}
    v_readfirstlane_b32 s{S_TAG}, v{vdata}
    s_nop 3
{L}:
    """)
    get_tag(a)

def poll_addr2(a, vaddr, vt, base1, n1, base2):
    a(f"v_lshlrev_b32 v{vaddr}, 4, v1")
    a(f"v_add_u32 v{vt}, {base2 - 16*n1}, v{vaddr}")
    a(f"v_add_u32 v{vaddr}, {base1}, v{vaddr}")
    a(f"v_cmp_le_u32 vcc, {n1}, v1")
    a(f"s_nop 1")
    a(f"v_cndmask_b32 v{vaddr}, v{vaddr}, v{vt}, vcc")
```

```python
import sys
sys.path.insert(0, "gen")
from common import *
from side import *
from sync import *
import p1, p2, p3, common, side

NAME = "parallel_sum__sliding_block__mixer_channel_mlp__prompt"
S_FHOFF = 86
ST = "sc1"; LD = "sc1"

def code_prefetch(a):
    L = a.label("pf")
    a(f"""
    s_getpc_b64 s[40:41]
{L}_pc:
    s_sub_u32 s40, s40, {L}_pc-{NAME}_kernel
    s_subb_u32 s41, s41, 0
    s_lshr_b32 s42, s{S_WG}, 3
    s_lshl_b32 s42, s42, 11
    s_cmp_ge_u32 s42, Lcode_end-{NAME}_kernel
    s_cbranch_scc1 {L}
    v_lshlrev_b32 v2, 2, v0
    v_add_u32 v2, s42, v2
    global_load_dword v240, v2, s[40:41]
{L}:
    """)

def build(stampmode=None):
    hdr = open("cdna_kernels/%s.s.ref" % NAME).read().split("; Override")[0]
    out = hdr
    out += f"; @launch grid=(256,1,1) block=(512,1,1) lds={p1.P1_LDS}\n"
    out += '.amdgcn_target "amdgcn-amd-amdhsa--gfx950"\n.text\n'
    a = Asm()
    a("s_cmp_ge_u32 s2, 256"); a("s_cbranch_scc1 Lend")
    if stampmode in ("all", "dbg", "side", "p1", "p1x", "p1y"): stamp(a, 0)
    if stampmode == "dbg": a("s_memrealtime s[96:97]")
    prologue_issue(a)
    code_prefetch(a)
    a(f"s_mov_b32 s{S_FHOFF}, 0")
    a(f"s_mov_b32 s{S_TAG}, 0")
    p1.p1_decode(a, "Lside")
    p1.p1_setup_pre(a)
    prologue_wait(a)
    rowstats_issue(a)
    srd(a, SRD_DBG, P_DBG, P_DBG+1, 256)
    p1.p1_setup_post(a)
    def p1_poll_issue(a):
        a(f"s_lshl_b32 s40, s{p1.S_RB}, 9")
        a(f"s_add_u32 s40, s40, {FS}")
        poll_addr2(a, 251, 252, "s40", 32, FA)
        with W0(a):
            a(f"buffer_load_dword v252, v251, s[{SRD_WS}:{SRD_WS+3}], 0 offen sc1")
    def p1_poll_check(a):
        with W0(a):
            poll_finish(a, 59, 251, 252)
    def tag_iss(a):
        with W0(a):
            tag_issue(a, 250)
    def tag_chk(a):
        with W0(a):
            tag_finish(a, 250)
    def sig_fs(a):
        with W0(a):
            a(f"s_lshl_b32 s62, s{S_WG}, 4")
            a(f"s_add_u32 s62, s62, {FS}")
            signal(a, "s62", vt=4)
    p1_hooks = {("post", 0): tag_iss, ("pre", 1): tag_chk, ("post", 1): sig_fs}
    def p1_sigq(a):
        a("s_waitcnt vmcnt(0)")
        a("s_barrier")
        with W0(a):
            a(f"""
            s_lshl_b32 s62, s{p1.S_RB}, 5
            s_add_u32 s62, s62, s{p1.S_PAIR}
            s_lshl_b32 s62, s62, 4
            s_add_u32 s63, s62, {FH}
            s_add_u32 s62, s62, {FQ}
            """)
            signal(a, "s62", vt=4)
            a(f"s_cmp_eq_u32 s{p1.S_ISH}, 1")
            a(f"s_cselect_b32 s{S_FHOFF}, s63, 0")
    saved = common.STAMP
    common.STAMP = saved and stampmode in ("p1", "p1x", "p1y")

    if stampmode != "p1y": stamp(a, 1)
    p1.NOST5 = stampmode in ("p1x", "p1y")
    if stampmode == "p1y": p1.CSTAMP = {5: (1, None), 6: (2, None), 7: (3, 4), 8: (5, 6)}
    p1.p1_gemm(a, ST, LD, poll_issue=p1_poll_issue, poll_check=p1_poll_check, sigq=p1_sigq, hooks=p1_hooks)
    common.STAMP = saved
    if stampmode in ("all", "dbg"): stamp(a, 1)
    a("s_branch Lp2")
    a("Lside:")
    common.STAMP = False
    prologue_wait(a)
    rowstats_issue(a)
    srd(a, SRD_DBG, P_DBG, P_DBG+1, 256)
    side_cs_loads(a, 12)
    tag_boot(a)
    common.STAMP = saved and stampmode == "side"
    stamp(a, 1)
    L = a.label("sw")
    a(f"""
    s_cmp_ge_u32 s12, 27
    s_cbranch_scc1 {L}_0
    s_waitcnt vmcnt(20)
    s_branch {L}_1
{L}_0:
    s_waitcnt vmcnt(0)
{L}_1:
    """)
    a("v_mov_b32 v14, v2"); a("v_mov_b32 v15, v3")
    rowstats_finish(a, ST)
    a("v_mov_b32 v2, v14"); a("v_mov_b32 v3, v15")
    stamp(a, 2)
    side_cs2(a, 12, ST)
    stamp(a, 3)
    a("s_waitcnt vmcnt(0)")
    a("s_barrier")
    stamp(a, 4)
    with W0(a):
        get_tag(a)
        a(f"s_lshl_b32 s62, s{S_WG}, 4")
        a(f"s_add_u32 s62, s62, {FS}")
        signal(a, "s62")
        a(f"s_lshl_b32 s62, s12, 4")
        a(f"s_add_u32 s62, s62, {FA}")
        signal(a, "s62")
    a(f"s_mov_b32 s30, s12")
    side_w3_step(a, 30, ST)
    stamp(a, 5)
    L = a.label("w3_2")
    a(f"""
    s_add_u32 s30, s12, 40
    s_cmp_ge_u32 s30, 68
    s_cbranch_scc1 {L}
    """)
    side_w3_step(a, 30, ST)
    a(f"{L}:")
    a("s_waitcnt vmcnt(0)")
    a("s_barrier")
    with W0(a):
        a(f"s_lshl_b32 s62, s12, 4")
        a(f"s_add_u32 s62, s62, {FB}")
        signal(a, "s62")
    stamp(a, 6)
    common.STAMP = saved
    if stampmode in ("all", "dbg"): stamp(a, 1)
    a("Lp2:")
    def p2_presync(a):
        with W0(a):
            get_tag(a)
            a(f"""
            s_lshl_b32 s54, s{p2.S_QB}, 9
            s_add_u32 s54, s54, {FQ}
            s_sub_u32 s55, s54, 512
            s_cmp_eq_u32 s{p2.S_QB}, 0
            s_cselect_b32 s55, s54, s55
            """)
            poll(a, "s54", 27, extra=("s55", 27))
        a("s_barrier")
    def p2_postload(a):
        p3.p3_decode(a)
        a(f"v_lshlrev_b32 v59, 4, v1")
        a(f"v_add_u32 v59, {FB}, v59")
        with W0(a):
            L = a.label("fh")
            a(f"s_cmp_eq_u32 s{S_FHOFF}, 0")
            a(f"s_cbranch_scc1 {L}")
            signal(a, f"s{S_FHOFF}")
            a(f"{L}:")
            a(f"buffer_load_dword v60, v59, s[{SRD_WS}:{SRD_WS+3}], 0 offen sc1")
        a(f"""
        s_lshl_b32 s{S_FHOFF}, s{p2.S_QB}, 5
        s_add_u32 s{S_FHOFF}, s{S_FHOFF}, s{p2.S_H}
        s_lshl_b32 s{S_FHOFF}, s{S_FHOFF}, 4
        s_add_u32 s{S_FHOFF}, s{S_FHOFF}, {FO}
        """)
    def p2_mid(a):
        a("s_waitcnt vmcnt(0)")
        with W0(a):
            poll_finish(a, 40, 59, 60)
        a(f"""
        s_lshr_b32 s54, s{p3.S_RBK}, 2
        s_lshl_b32 s54, s54, 9
        s_add_u32 s54, s54, {FH}
        v_lshlrev_b32 v59, 4, v1
        v_add_u32 v59, s54, v59
        """)
        p3.p3_setup_a(a)
        a("s_barrier")
    def h3(a):
        with W0(a):
            a(f"buffer_load_dword v60, v59, s[{SRD_WS}:{SRD_WS+3}], 0 offen sc1")
    def h5(a):
        with W0(a):
            a("s_waitcnt vmcnt(0)")
            poll_finish(a, 24, 59, 60)
        a("s_barrier")
        g = []
        for c in (0, 1):
            for u in range(4): g += p3.p3_aload_str(c, u, LD)
        return g
    inter = p3.p3_dmaB_groups(0, LD, p2.VKD) + p3.p3_dmaB_groups(1, LD, p2.VKD)
    common.STAMP = saved and stampmode == "p2"
    if stampmode == "p2": stamp(a, 0)
    p2.p2_body(a, ST, LD, presync=p2_presync, postload=p2_postload, mid=p2_mid, inter=inter, split_v=True, hooks={3: h3, 5: h5})
    common.STAMP = saved
    if stampmode in ("all", "dbg"): stamp(a, 2)
    def p3_post(a, c):
        if c == 1:
            with W0(a):
                signal(a, f"s{S_FHOFF}")
    def p3_sync_o(a):
        with W0(a):
            a(f"""
            s_lshr_b32 s54, s{p3.S_RBK}, 2
            s_lshl_b32 s54, s54, 9
            s_add_u32 s54, s54, {FO}
            """)
            poll(a, "s54", 32)
        a("s_barrier")
    common.STAMP = saved and stampmode == "p3"
    if stampmode == "p3": stamp(a, 0)
    p3.p3_setup_b(a)
    p3.p3_main(a, LD, sync_o=p3_sync_o, post=p3_post, prefetched=True, first_newer=6)
    stamp(a, 6)
    p3.p3_epilogue(a)
    common.STAMP = saved
    if saved and stampmode != "dbg":
        a("s_waitcnt vmcnt(0)")
        if stampmode == "all": stamp(a, 3)
        stamp_dump(a, 0)
    if stampmode == "dbg":
        a("s_waitcnt vmcnt(0)")
        stamp(a, 3)
        a("s_memrealtime s[98:99]")
        a("s_waitcnt lgkmcnt(0)")
        L = a.label("dd")
        for k, wg in enumerate((0, 100, 255)):
            a(f"s_cmp_lg_u32 s2, {wg}")
            a(f"s_cbranch_scc1 {L}_{k}")
            a(f"s_cmp_lg_u32 s3, 0")
            a(f"s_cbranch_scc1 {L}_{k}")
            a("v_mov_b32 v2, 0")
            for i in range(1, 4):
                a(f"s_sub_u32 s40, s{88+2*i}, s88")
                a(f"v_mov_b32 v3, s40")
                a(f"buffer_store_dword v3, v2, s[{SRD_DBG}:{SRD_DBG+3}], 0 offen offset:{4*(1+5*k+i-1)}")
            a(f"s_sub_u32 s40, s98, s96")
            a(f"v_mov_b32 v3, s40")
            a(f"buffer_store_dword v3, v2, s[{SRD_DBG}:{SRD_DBG+3}], 0 offen offset:{4*(1+5*k+3)}")
            a(f"{L}_{k}:")
    a("Lend:"); a("s_endpgm")
    out += header(NAME + "_kernel") + a.text()
    out += "Lcode_end:\n.fill 576, 4, 0xBF800000\n"
    out += '.section .rodata,"a"\n' + desc(NAME + "_kernel")
    return out

if __name__ == "__main__":
    mode = sys.argv[2] if len(sys.argv) > 2 else None
    if mode: common.STAMP = True
    s = build(mode)
    open(sys.argv[1], "w").write(s)
    print(len(s))
```
